```python
import torch

def _softmax(x, axis=-1):
    return torch.softmax(x, dim=axis)
def _gelu(x):
    return torch.nn.functional.gelu(x, approximate="tanh")
def _silu(x):
    return torch.nn.functional.silu(x)
def _sigmoid(x):
    return torch.sigmoid(x)
def _layernorm(x, axis=-1, eps=1e-5):
    m = x.mean(dim=axis, keepdim=True)
    v = x.var(dim=axis, keepdim=True, unbiased=False)
    return (x - m) / torch.sqrt(v + eps)
def _scatter_add(tgt, idx, src, axis=0):
    return tgt.clone().index_add_(axis, idx, src)
def _segment_sum(src, seg, n):
    out = torch.zeros((n,) + src.shape[1:], dtype=src.dtype)
    return out.index_add_(0, seg, src)
def _pad(x, pw):
    flat = tuple(v for pair in reversed(pw) for v in pair)
    return torch.nn.functional.pad(x, flat)

kernel_name = 'concat_heads__gqa_block_cached__gqa_block_cached__near_ridge'

def setup_inputs():

    _w = (lambda a: (lambda t: t.to(torch.bfloat16) if t.is_floating_point() else t)(torch.as_tensor(a)))
    def _A_setup():
        B, Sq, D = 32, 32, 640
        Hq, Hkv, Sk, Dh = 32, 32, 32, 128
        assert Hq % Hkv == 0, (Hq, Hkv)
        return {
            "x": _w((lambda *s: torch.randn(*s, dtype=torch.bfloat16) * 0.8)(B, Sq, D)),
            "k_cache": _w((lambda *s: torch.randn(*s, dtype=torch.bfloat16) * 0.8)(B, Hkv, Sk, Dh)),
            "v_cache": _w((lambda *s: torch.randn(*s, dtype=torch.bfloat16) * 0.05)(B, Hkv, Sk, Dh)),
            "wq": _w((lambda *s: torch.randn(*s, dtype=torch.bfloat16) * 0.8)(D, Hq * Dh) * (D ** -0.5)),
            "wo": _w((lambda *s: torch.randn(*s, dtype=torch.bfloat16) * 0.05)(Hq * Dh, D) * ((Hq * Dh) ** -0.5)),
        }
    _A_in = _A_setup()

    def _B_setup():
        B, Sq, D = 32, 32, 640
        Hq, Hkv, Sk, Dh = 32, 32, 32, 128
        assert Hq % Hkv == 0, (Hq, Hkv)
        return {
            "x": _w((lambda *s: torch.randn(*s, dtype=torch.bfloat16) * 0.8)(B, Sq, D)),
            "k_cache": _w((lambda *s: torch.randn(*s, dtype=torch.bfloat16) * 0.8)(B, Hkv, Sk, Dh)),
            "v_cache": _w((lambda *s: torch.randn(*s, dtype=torch.bfloat16) * 0.05)(B, Hkv, Sk, Dh)),
            "wq": _w((lambda *s: torch.randn(*s, dtype=torch.bfloat16) * 0.8)(D, Hq * Dh) * (D ** -0.5)),
            "wo": _w((lambda *s: torch.randn(*s, dtype=torch.bfloat16) * 0.05)(Hq * Dh, D) * ((Hq * Dh) ** -0.5)),
        }
    _B_in = _B_setup()

    return {
        "A_x": _A_in["x"],
        "A_k_cache": _A_in["k_cache"],
        "A_v_cache": _A_in["v_cache"],
        "A_wq": _A_in["wq"],
        "A_wo": _A_in["wo"],
        "B_x": _B_in["x"],
        "B_k_cache": _B_in["k_cache"],
        "B_v_cache": _B_in["v_cache"],
        "B_wq": _B_in["wq"],
        "B_wo": _B_in["wo"],
    }

def reference(A_x, A_k_cache, A_v_cache, A_wq, A_wo, B_x, B_k_cache, B_v_cache, B_wq, B_wo):
    def _A_ref(x, k_cache, v_cache, wq, wo):
        B, Sq, D = x.shape
        Hq, Dh = 32, 128
        Hkv = k_cache.shape[1]
        rep = Hq // Hkv
        q = (lambda x, *d: x.permute(*d))((x @ wq).reshape(B, Sq, Hq, Dh), 0, 2, 1, 3)
        k = (lambda x, n, axis: torch.repeat_interleave(x, n, dim=axis))(k_cache, rep, axis=1)
        v = (lambda x, n, axis: torch.repeat_interleave(x, n, dim=axis))(v_cache, rep, axis=1)
        scores = torch.einsum("bhqd,bhkd->bhqk", q, k) * (Dh ** -0.5)
        p = _softmax(scores, axis=-1)
        o = torch.einsum("bhqk,bhkd->bhqd", p, v)
        return (lambda x, *d: x.permute(*d))(o, 0, 2, 1, 3).reshape(B, Sq, Hq * Dh) @ wo

    def _B_ref(x, k_cache, v_cache, wq, wo):
        B, Sq, D = x.shape
        Hq, Dh = 32, 128
        Hkv = k_cache.shape[1]
        rep = Hq // Hkv
        q = (lambda x, *d: x.permute(*d))((x @ wq).reshape(B, Sq, Hq, Dh), 0, 2, 1, 3)
        k = (lambda x, n, axis: torch.repeat_interleave(x, n, dim=axis))(k_cache, rep, axis=1)
        v = (lambda x, n, axis: torch.repeat_interleave(x, n, dim=axis))(v_cache, rep, axis=1)
        scores = torch.einsum("bhqd,bhkd->bhqk", q, k) * (Dh ** -0.5)
        p = _softmax(scores, axis=-1)
        o = torch.einsum("bhqk,bhkd->bhqd", p, v)
        return (lambda x, *d: x.permute(*d))(o, 0, 2, 1, 3).reshape(B, Sq, Hq * Dh) @ wo

    a = _A_ref(A_x, A_k_cache, A_v_cache, A_wq, A_wo)
    b = _B_ref(B_x, B_k_cache, B_v_cache, B_wq, B_wo)
    return torch.concatenate([a, b], axis=-1)
```

```python
import re

REG = re.compile(r'\b([vas])(\d+)\b|\b([vas])\[(\d+):(\d+)\]')

def regs_of(op):
    out = set()
    for m in REG.finditer(op):
        if m.group(1):
            out.add((m.group(1), int(m.group(2))))
        else:
            for i in range(int(m.group(4)), int(m.group(5)) + 1):
                out.add((m.group(3), i))
    if re.search(r'\bvcc\b', op): out.add(('s', 'vcc'))
    if re.search(r'\bm0\b', op): out.add(('s', 'm0'))
    if re.search(r'\bexec\b', op): out.add(('s', 'exec'))
    return out

TRANS = ('v_exp_f32', 'v_log_f32', 'v_rcp_f32', 'v_rsq_f32', 'v_sqrt_f32')

class Ins:
    def __init__(self, text, tag=None):
        self.text = text.strip()
        self.tag = tag
        t = self.text.split(';')[0].strip()
        self.label = t.endswith(':')
        parts = t.split(None, 1)
        self.mn = parts[0] if parts else ''
        ops = [o.strip() for o in parts[1].split(',')] if len(parts) > 1 else []
        self.ops = ops
        mn = self.mn
        self.rd, self.wr = set(), set()
        self.srcC = set(); self.srcAB = set()
        if self.label or not mn:
            self.kind = 'label'
        elif mn.startswith('v_mfma'):
            self.kind = 'mfma'
            self.wr = regs_of(ops[0]); self.srcAB = regs_of(ops[1]) | regs_of(ops[2]); self.srcC = regs_of(ops[3])
            self.rd = self.srcAB | self.srcC
        elif mn.startswith('v_'):
            self.kind = 'valu'
            if mn.startswith('v_permlane') and 'swap' in mn:
                self.wr = regs_of(ops[0]) | regs_of(ops[1]); self.rd = set(self.wr)
            else:
                self.wr = regs_of(ops[0])
                for o in ops[1:]: self.rd |= regs_of(o)
                if mn.startswith(('v_fmac', 'v_dot2c')): self.rd |= self.wr
        elif mn.startswith('ds_'):
            self.kind = 'ds'
            if mn.startswith('ds_read'):
                self.wr = regs_of(ops[0]); self.rd = regs_of(ops[1])
            else:
                for o in ops: self.rd |= regs_of(o)
        elif mn.startswith(('buffer_', 'global_')):
            self.kind = 'vmem'
            if ' lds' in t or mn.startswith('global_load_lds'):
                for o in ops: self.rd |= regs_of(o)
                self.rd.add(('s', 'm0'))
            elif 'load' in mn:
                self.wr = regs_of(ops[0])
                for o in ops[1:]: self.rd |= regs_of(o)
            else:
                for o in ops: self.rd |= regs_of(o)
        elif mn in ('s_waitcnt', 's_barrier', 's_nop', 's_endpgm', 's_sleep', 's_setprio'):
            self.kind = 'ctl'
        elif mn.startswith(('s_branch', 's_cbranch')):
            self.kind = 'branch'
        elif mn.startswith(('s_load', 's_memtime', 's_memrealtime')):
            self.kind = 'smem'
            self.wr = regs_of(ops[0])
        elif mn.startswith('s_'):
            self.kind = 'salu'
            if mn.startswith(('s_cmp', 's_bitcmp')):
                for o in ops: self.rd |= regs_of(o)
            else:
                self.wr = regs_of(ops[0])
                for o in ops[1:]: self.rd |= regs_of(o)
                if 'saveexec' in mn: self.wr.add(('s', 'exec'))
        else:
            self.kind = 'dir'
    def states(self):
        if self.kind in ('label', 'dir'): return 0
        if self.mn == 's_nop': return int(self.ops[0], 0) + 1
        return 1
    def is_wide_store(self):
        return self.kind == 'vmem' and 'store' in self.mn and ('x4' in self.mn or 'x3' in self.mn)

def need(p, c):
    n = 0
    vec = lambda s: {r for r in s if r[0] in 'va'}
    sg = lambda s: {r for r in s if r[0] == 's'}
    if p.kind == 'mfma':
        passes = 8 if '32x32' in p.mn else 4
        big = 12 if passes == 8 else 8
        if c.kind == 'mfma':
            if p.wr & c.srcAB: n = max(n, big)
            if p.wr & c.srcC and p.wr != c.srcC: n = max(n, big - 2)
            if p.wr & c.wr and not (p.wr == c.srcC): n = max(n, big)
        elif c.kind in ('valu', 'ds', 'vmem'):
            if p.wr & (c.rd | c.wr): n = max(n, big)
            if c.kind == 'valu' and p.srcC & c.wr: n = max(n, passes - 1)
    if p.kind == 'valu':
        if c.kind == 'mfma' and vec(p.wr) & c.rd: n = max(n, 2)
        if c.kind == 'valu':
            if c.mn.startswith('v_permlane') and vec(p.wr) & c.rd: n = max(n, 2)
            if c.mn.startswith(('v_readfirstlane', 'v_readlane')) and vec(p.wr) & c.rd: n = max(n, 1)
            if p.mn.startswith(TRANS) and vec(p.wr) & c.rd: n = max(n, 1)
            if sg(p.wr) & c.rd: n = max(n, 2)
            if 'dpp' in c.text and vec(p.wr) & c.rd: n = max(n, 2)
            if p.mn.startswith('v_dot') and vec(p.wr) & (c.rd | c.wr): n = max(n, 3)
        if c.kind == 'vmem' and sg(p.wr) & c.rd: n = max(n, 5)
        if c.kind in ('salu', 'branch') and (sg(p.wr) & c.rd or (c.kind == 'branch' and ('s', 'vcc') in p.wr)): n = max(n, 2)
        if p.mn.startswith('v_dot') and c.kind in ('vmem', 'ds', 'mfma') and vec(p.wr) & c.rd: n = max(n, 3)
    if p.kind == 'salu':
        if ('s', 'm0') in p.wr and c.kind == 'vmem' and ('s', 'm0') in c.rd: n = max(n, 1)
    if p.is_wide_store():
        data = regs_of(p.ops[0])
        if data & c.wr: n = max(n, 2)
    return n

class Prog:
    def __init__(self):
        self.ins = []
        self.vm = []
        self.lg = []
        self.pads = 0
    def e(self, text, tag=None, count=True):
        if callable(text):
            return text(self)
        if isinstance(text, tuple):
            text, tag = text
        for line in text.split('\n'):
            if not line.strip(): continue
            i = Ins(line, tag)
            self.ins.append(i)
            if i.kind == 'vmem' and count: self.vm.append(tag)
            if i.kind == 'ds' and count: self.lg.append(tag)
    def wait_lg(self, tag):
        last = max(k for k, t in enumerate(self.lg) if t == tag)
        self.e(f"s_waitcnt lgkmcnt({min(15, len(self.lg) - 1 - last)})")
    def vmN(self, tags):
        tags = set(tags)
        last = -1
        for k, t in enumerate(self.vm):
            if t in tags: last = k
        if last < 0: return None
        return len(self.vm) - 1 - last
    def wait(self, tags=(), lgkm=None):
        n = self.vmN(tags) if tags else None
        parts = []
        if n is not None:
            assert n <= 63, n
            parts.append(f"vmcnt({n})")
        if lgkm is not None: parts.append(f"lgkmcnt({lgkm})")
        if parts: self.e("s_waitcnt " + " ".join(parts))
    def finalize(self):
        out = []
        for c in self.ins:
            if c.kind not in ('label', 'dir'):
                dist = 0; req = 0
                for p in reversed(out):
                    if dist >= 14: break
                    r = need(p, c) - dist
                    if r > req: req = r
                    dist += p.states()
                if req > 0:
                    out.append(Ins(f"s_nop {req-1}")); self.pads += 1
            out.append(c)
        self.ins = out
    def text(self):
        return "\n".join(("" if i.kind in ('label', 'dir') else "    ") + i.text for i in self.ins) + "\n"

def interleave(P, mfmas, ds=(), dma=(), alu=(), ds_end=5, dma_span=None, ds_start=0):
    n = len(mfmas)
    mem = [[] for _ in range(n)]
    pre = [[] for _ in range(n + 1)]
    lo, hi = dma_span if dma_span else (1, n)
    nd = len(dma)
    prevg = -1
    for k, (t, tag, pr) in enumerate(dma):
        g = lo + int((k + 0.5) * (hi - lo) / nd)
        g = min(max(g, prevg + 1), n - 1)
        mem[g].append((t, tag))
        for j, x in enumerate(reversed(pr)):
            gg = max(g - j, prevg + 1)
            pre[gg].insert(0, x)
        prevg = g
    free = [g for g in range(ds_start, max(n - ds_end, ds_start + 1)) if not mem[g]]
    ds = list(ds)
    if len(ds) <= len(free):
        for t, g in zip(ds, free): mem[g].append((t, None))
    else:
        per = [1] * len(free)
        extra = len(ds) - len(free)
        k = 0
        while extra:
            per[(k * 2) % len(free) if k * 2 < len(free) else k % len(free)] += 1; extra -= 1; k += 1
        it = iter(ds)
        for g, c in zip(free, per):
            for _ in range(c): mem[g].append((next(it), None))
    alu = list(alu)
    for x in pre[0]: P.e(x)
    for g in range(n):
        P.e(mfmas[g])
        for (t, tag) in mem[g]: P.e(t, tag)
        room = (1 if mem[g] else 2) - len(pre[g + 1])
        for x in pre[g + 1]: P.e(x)
        while room > 0 and alu and alu[0][0] <= g:
            P.e(alu.pop(0)[1]); room -= 1
    return alu
```

```python
import sys, math, struct
from asmlib import Prog, interleave

NAME = "concat_heads__gqa_block_cached__gqa_block_cached__near_ridge"

class Cfg:
    nt_x = ""; nt_wq = ""; nt_k = ""; nt_v = ""; nt_wo = ""
    sc_st = " sc1"; sc_ld = " sc1"
    out_aux = ""
    stamps = False
    stop = None
    pbase = 0
    rbase = 4 << 20
    tsbase = 16 << 20
    spin_cap = 4000
    poison_steps = (3, 4, 5)

sX, sK, sV, sWq, sWo, sOut, sDbg, sWs = (f"s[{b}:{b+3}]" for b in (8, 12, 16, 20, 24, 28, 32, 36))
sH = lambda hi, half: f"s{40 + hi*2 + half}"
sHW = lambda hi, half: f"s{56 + hi*2 + half}"
s_w, s_br, s_oct, s_gb, s_c, s_p, s_hh = (f"s{i}" for i in range(72, 79))
s_m4, s_mx, s_mwo, s_kscr, s_mp = (f"s{i}" for i in range(79, 84))
s_xb = ["s84", "s85"]; s_kb = ["s86", "s87"]
s_oa, s_ox, s_ok = "s88", "s89", "s90"
s_pown, s_pg = "s91", "s92"
s_rs = [None, "s93", "s94", "s95"]; s_rr = "s96"; s_out = "s97"; s_dbg = "s98"; s_cst = "s99"
s_cnt = "s7"

def q4(f, b): return f"{f}[{b}:{b+3}]"
def q2(f, b): return f"{f}[{b}:{b+1}]"

Qacc = lambda t, i: ((t & 1) * 16 + (t >> 1) * 4 + i) * 4
vA = lambda win, t: 128 + win * 4 + t
vB = lambda win, ks: 136 + win * 2 + ks
vDWq = lambda i: 140 + i
vDx = lambda i: 144 + i
vDK = lambda i: 146 + i
vRK = lambda s, j: 150 + s * 2 + j
vPois = 160
vP = 208
vT = 224
vL16, vL8 = 232, 233
vDV = lambda i: 234 + i
vDWo = lambda i: 238 + i
vRV = lambda win, ks: 243 + win * 2 + ks
vRW = lambda win, par: 247 + win * 2 + par
vRP, vChk, vOutA, vTS = 251, 252, 253, 254
Af = lambda buf, t, ks: buf * 32 + (t * 2 + ks) * 4
Bf = lambda buf, i, ks: 64 + buf * 32 + (i * 2 + ks) * 4
Kf = lambda bi, kt, s: 192 + ((bi * 2 + kt) * 4 + s) * 4
BBUF = [[128 + 4 * k for k in range(16)] + [0, 4], [8 + 4 * k for k in range(18)]]
Vf = lambda buf, bi, kt, ks: BBUF[buf][(bi * 2 + kt) * 2 + ks]
Wf = lambda buf, nt, ks: BBUF[buf][8 + nt * 2 + ks]
Oacc = lambda i, nt: (i * 5 + nt) * 4
VWf = lambda bi, nt: 80 + (bi * 5 + nt) * 4
VWacc = lambda bi, nt, kt: 128 + ((bi * 5 + nt) * 2 + kt) * 4
Sacc = lambda i, kt: 64 + (i * 2 + kt) * 4

ASLOT = 24576; BSLOT = 36864; WIN = 73728; SCR = 147456
aslot = lambda u: ((u + 4) % 6) * ASLOT
bslot = lambda k: (k % 4) * BSLOT

def mfma(d, a, b, c):
    return f"v_mfma_f32_16x16x32_bf16 {d}, {a}, {b}, {c}"

def build(cfg):
    P = Prog(); e = P.e
    slow = []
    nstamp = [0]
    def stamp():
        if not cfg.stamps: return
        e("s_memrealtime s[4:5]\ns_waitcnt lgkmcnt(0)")
        e(f"v_writelane_b32 v{vTS}, s4, {nstamp[0]}")
        nstamp[0] += 1

    e(f"{NAME}_kernel:")
    e("s_cmp_ge_u32 s2, 256\ns_cbranch_scc1 L_end")
    e("s_load_dwordx16 s[40:55], s[0:1], 0\ns_load_dwordx8 s[56:63], s[0:1], 64\ns_load_dwordx2 s[64:65], s[0:1], 96")
    t = [f"v{vT+i}" for i in range(8)]
    vq, vm, vr, vcc_, vl = t[0], t[1], t[2], t[3], t[4]
    e(f"v_lshrrev_b32 {t[5]}, 6, v0\nv_and_b32 {vl}, 63, v0\nv_readfirstlane_b32 {s_w}, {t[5]}")
    e(f"s_bfe_u32 {s_br}, s2, 0x10002\ns_and_b32 {s_oct}, s2, 3\ns_lshr_b32 {s_gb}, s2, 5\ns_bfe_u32 {s_c}, s2, 0x20003")
    e(f"s_lshr_b32 {s_p}, {s_w}, 1\ns_and_b32 {s_hh}, {s_w}, 1")
    e(f"v_lshrrev_b32 {vq}, 4, {vl}\nv_and_b32 {vm}, 15, {vl}\nv_bfe_u32 {vr}, {vl}, 2, 2\nv_and_b32 {vcc_}, 3, {vl}")
    e(f"v_lshlrev_b32 v{vL16}, 4, {vl}\nv_lshlrev_b32 v{vL8}, 3, {vl}")
    if cfg.stamps: e(f"v_mov_b32 v{vTS}, 0")
    e(f"s_lshl_b32 {s_m4}, {s_w}, 12")
    e(f"s_lshl_b32 s3, {s_w}, 11\ns_add_u32 {s_mx}, s3, 16384\ns_add_u32 {s_mp}, s3, {SCR}")
    e(f"s_mul_i32 s3, {s_w}, 5120\ns_add_u32 {s_mwo}, s3, 16384")
    e(f"s_lshl_b32 s3, {s_hh}, 1\ns_add_u32 s3, s3, {s_p}\ns_lshl_b32 s3, s3, 12\ns_add_u32 {s_kscr}, s3, {SCR}")
    e(f"s_lshl_b32 s3, {s_oct}, 2\ns_add_u32 s3, s3, {s_c}\ns_lshl_b32 s3, s3, 9")
    e(f"s_lshl_b32 s4, {s_w}, 17\ns_add_u32 s3, s3, s4")
    e(f"v_lshlrev_b32 {t[5]}, 13, {vq}\nv_add_u32 {t[5]}, s3, {t[5]}")
    e(f"v_and_b32 {t[6]}, 1, {vm}\nv_lshl_add_u32 {t[5]}, {t[6]}, 4, {t[5]}")
    e(f"v_lshrrev_b32 {t[6]}, 1, {vm}\nv_xor_b32 {t[6]}, {t[6]}, {vq}")
    for i in range(4):
        if i == 2: e(f"v_xor_b32 {t[6]}, 4, {t[6]}")
        if i in (0, 2):
            e(f"v_lshrrev_b32 {t[7]}, 2, {t[6]}\nv_lshl_add_u32 v{vDWq(i)}, {t[7]}, 8, {t[5]}")
            e(f"v_and_b32 {t[7]}, 3, {t[6]}\nv_lshl_add_u32 v{vDWq(i)}, {t[7]}, 5, v{vDWq(i)}")
            if i == 2: e(f"v_add_u32 v{vDWq(2)}, {2*(4*8192-1024)}, v{vDWq(2)}")
        else:
            e(f"v_add_u32 v{vDWq(i)}, {4*8192-1024}, v{vDWq(i-1)}")
    e(f"s_and_b32 s3, {s_oct}, 1\ns_xor_b32 s3, s3, {s_hh}\ns_lshl_b32 s3, s3, 4")
    e(f"s_lshl_b32 s4, {s_gb}, 7\ns_add_u32 s3, s3, s4\ns_lshl_b32 s4, {s_p}, 6\ns_add_u32 s3, s3, s4")
    e(f"v_lshrrev_b32 {t[5]}, 3, {vl}\nv_add_u32 {t[5]}, s3, {t[5]}\nv_mul_u32_u24 {t[5]}, 1280, {t[5]}")
    e(f"v_and_b32 {t[6]}, 7, {vl}\nv_xor_b32 {t[6]}, {t[6]}, {vq}")
    e(f"v_lshl_add_u32 v{vDx(0)}, {t[6]}, 4, {t[5]}")
    e(f"v_xor_b32 {t[6]}, 4, {t[6]}\nv_lshl_add_u32 v{vDx(1)}, {t[6]}, 4, {t[5]}\nv_add_u32 v{vDx(1)}, {8*1280-1024}, v{vDx(1)}")
    e(f"s_lshr_b32 s5, {s_oct}, 1\ns_mul_i32 {s_xb[0]}, s5, 40960\ns_xor_b32 s6, s5, 1\ns_mul_i32 {s_xb[1]}, s6, 40960")
    e(f"s_lshl_b32 s3, {s_gb}, 1\ns_add_u32 s3, s3, {s_p}\ns_lshl_b32 s3, s3, 19")
    e(f"s_lshl_b32 s4, {s_oct}, 2\ns_add_u32 s4, s4, {s_c}\ns_lshl_b32 s4, s4, 1\ns_add_u32 s4, s4, {s_hh}\ns_lshl_b32 s4, s4, 13\ns_add_u32 s3, s3, s4")
    e(f"s_lshl_b32 s5, s5, 18\ns_add_u32 {s_kb[0]}, s3, s5\ns_lshl_b32 s6, s6, 18\ns_add_u32 {s_kb[1]}, s3, s6")
    e(f"v_xor_b32 {t[6]}, {vm}, {vq}\nv_lshlrev_b32 {t[6]}, 4, {t[6]}\nv_lshl_add_u32 v{vDK(0)}, {vq}, 8, {t[6]}")
    for i in range(1, 4): e(f"v_xor_b32 v{vDK(i)}, {64*i}, v{vDK(0)}")
    e("s_waitcnt lgkmcnt(0)")
    e(f"s_cmp_eq_u32 {s_br}, 0")
    for dst, a, b, size in ((8, 40, 50, 1310720), (20, 46, 56, 5242880), (12, 42, 52, 8388608), (16, 44, 54, 8388608), (24, 48, 58, 5242880)):
        e(f"s_cselect_b64 s[{dst}:{dst+1}], s[{a}:{a+1}], s[{b}:{b+1}]")
        e(f"s_mov_b32 s{dst+2}, {size}\ns_mov_b32 s{dst+3}, 0x20000")
    stamp()

    def dma_wq(st, tag):
        base = aslot(st)
        so = 524288 * (st >> 1) + 128 * (st & 1)
        return [(f"buffer_load_dwordx4 v{vDWq(i)}, {sWq}, {s_oa} offen offset:{1024*i}{cfg.nt_wq} lds", tag,
                 [f"s_mov_b32 {s_oa}, {so}", f"s_add_u32 m0, {s_m4}, {base}"] if i == 0 else []) for i in range(4)]
    def dma_x(y, base, tag):
        return [(f"buffer_load_dwordx4 v{vDx(i)}, {sX}, {s_ox} offen offset:{1024*i}{cfg.nt_x} lds", tag,
                 [f"s_add_u32 {s_ox}, {s_xb[y&1]}, {128*(y>>1)}", f"s_add_u32 m0, {s_mx}, {base}"] if i == 0 else []) for i in range(2)]
    def dma_k(n, tag):
        bi, kt = n >> 1, n & 1
        return [(f"buffer_load_dwordx4 v{vDK(i)}, {sK}, {s_ok} offen offset:{1024*i}{cfg.nt_k} lds", tag,
                 [f"s_add_u32 {s_ok}, {s_kb[bi]}, {4096*kt}", f"s_mov_b32 m0, {s_kscr}"] if i == 0 else []) for i in range(4)]
    def dma_unit(u):
        r = dma_wq(u, f"U{u}")
        if u + 1 < 20: r += dma_x(u + 1, aslot(u), f"U{u}")
        return r
    def dma_v(k):
        return [(f"buffer_load_dwordx4 v{vDV(i)}, {sV}, {sH(k>>1, k&1)} offen offset:{1024*i}{cfg.nt_v} lds", f"B{k}",
                 [f"s_add_u32 m0, {s_m4}, {bslot(k)}"] if i == 0 else []) for i in range(4)]
    def dma_wo(k):
        return [(f"buffer_load_dwordx4 v{vDWo(i)}, {sWo}, {sHW(k>>1, k&1)} offen offset:{1024*(i&3)}{cfg.nt_wo} lds", f"B{k}",
                 [f"s_add_u32 m0, {s_mwo}, {bslot(k) + (4096 if i == 4 else 0)}"] if i in (0, 4) else []) for i in range(5)]
    def dma_p(hi):
        return [(f"buffer_load_dwordx4 v{vL16}, {sWs}, {s_ok} offen offset:{1024*i}{cfg.sc_ld} lds", f"P{hi}",
                 [f"s_add_u32 {s_ok}, {s_pg}, {sH(hi, 0)}", f"s_add_u32 m0, {s_mp}, {8192*(hi&1)}"] if i == 0 else []) for i in range(2)]
    def emit_dma(lst):
        for (tx, tag, pre) in lst:
            for x in pre: e(x)
            e(tx, tag)

    emit_dma(dma_x(0, aslot(5), "U0") + dma_unit(0) + dma_unit(1) + dma_k(0, "K0") + dma_unit(2) + dma_unit(3) + dma_unit(4) + dma_wq(5, "U5"))

    for dst, a, size in ((28, 60, 2621440), (32, 62, 256), (36, 64, 268435456)):
        e(f"s_mov_b64 s[{dst}:{dst+1}], s[{a}:{a+1}]\ns_mov_b32 s{dst+2}, {size}\ns_mov_b32 s{dst+3}, 0x20000")
    e(f"v_and_b32 {t[5]}, 1, {vq}\nv_lshl_or_b32 {t[5]}, {t[5]}, 2, {vr}")
    e(f"s_lshl_b32 s3, {s_hh}, 2\nv_xor_b32 {t[5]}, s3, {t[5]}")
    e(f"v_lshl_add_u32 {t[6]}, {vq}, 3, {vr}")
    e(f"v_lshlrev_b32 {t[7]}, 8, {t[6]}\nv_lshl_add_u32 {t[7]}, {vcc_}, 3, {t[7]}\nv_lshl_add_u32 v{vA(0,0)}, {t[5]}, 5, {t[7]}")
    for k in range(1, 4): e(f"v_xor_b32 v{vA(0,k)}, {32*k}, v{vA(0,0)}")
    for k in range(4): e(f"v_add_u32 v{vA(1,k)}, {WIN}, v{vA(0,k)}")
    e(f"v_mul_u32_u24 {t[7]}, 320, {t[6]}\nv_lshl_add_u32 {t[7]}, {vcc_}, 3, {t[7]}")
    e(f"s_mul_i32 s3, {s_hh}, 160\ns_add_u32 s3, s3, 16384\nv_add_u32 {t[7]}, s3, {t[7]}")
    e(f"s_lshl_b32 s3, {s_hh}, 6\ns_sub_u32 s3, 32, s3")
    e(f"v_and_b32 {t[5]}, 1, {vq}\nv_mul_lo_u32 {t[5]}, {t[5]}, s3")
    e(f"v_add_u32 v{vRW(0,0)}, {t[7]}, {t[5]}\nv_sub_u32 v{vRW(0,1)}, {t[7]}, {t[5]}")
    for k in range(2): e(f"v_add_u32 v{vRW(1,k)}, {WIN}, v{vRW(0,k)}")
    e(f"v_lshrrev_b32 {t[5]}, 1, {vm}\nv_xor_b32 {t[5]}, {t[5]}, {vq}\nv_lshlrev_b32 {t[5]}, 4, {t[5]}\nv_lshl_add_u32 {t[5]}, {vm}, 7, {t[5]}")
    e(f"s_lshl_b32 s3, {s_p}, 12\ns_add_u32 s3, s3, 16384\nv_add_u32 v{vB(0,0)}, s3, {t[5]}\nv_xor_b32 v{vB(0,1)}, 64, v{vB(0,0)}")
    e(f"s_lshl_b32 s3, {s_p}, 13\nv_add_u32 v{vRV(0,0)}, s3, {t[5]}\nv_xor_b32 v{vRV(0,1)}, 64, v{vRV(0,0)}")
    for k in range(2): e(f"v_add_u32 v{vB(1,k)}, {WIN}, v{vB(0,k)}\nv_add_u32 v{vRV(1,k)}, {WIN}, v{vRV(0,k)}")
    e(f"v_lshrrev_b32 {t[5]}, 1, {vq}\nv_xor_b32 {t[5]}, {t[5]}, {vm}\nv_lshlrev_b32 {t[5]}, 4, {t[5]}\nv_lshl_add_u32 {t[5]}, {vm}, 8, {t[5]}")
    e(f"v_and_b32 {t[6]}, 1, {vq}\nv_lshl_add_u32 {t[5]}, {t[6]}, 3, {t[5]}\nv_add_u32 v{vRK(0,0)}, {s_kscr}, {t[5]}")
    for k in range(1, 8): e(f"v_xor_b32 v{vRK(0,0)+k}, {32*k}, v{vRK(0,0)}")
    e(f"s_lshr_b32 s5, {s_oct}, 1\ns_xor_b32 s5, s5, {s_w}\ns_lshl_b32 s3, {s_gb}, 2\ns_add_u32 s3, s3, s5\ns_lshl_b32 s3, s3, 18")
    e(f"s_lshl_b32 s4, {s_oct}, 16\ns_add_u32 s3, s3, s4")
    e(f"v_lshrrev_b32 {t[5]}, 3, {vl}\nv_lshlrev_b32 {t[5]}, 8, {t[5]}\nv_add_u32 {t[5]}, s3, {t[5]}")
    e(f"v_and_b32 {t[6]}, 7, {vl}\nv_xor_b32 {t[6]}, {t[6]}, {vq}\nv_lshl_add_u32 v{vDV(0)}, {t[6]}, 4, {t[5]}")
    e(f"v_xor_b32 v{vDV(1)}, 64, v{vDV(0)}\nv_add_u32 v{vDV(1)}, 1024, v{vDV(1)}")
    e(f"v_add_u32 v{vDV(2)}, 2048, v{vDV(0)}\nv_add_u32 v{vDV(3)}, 2048, v{vDV(1)}")
    e(f"s_lshl_b32 s3, {s_oct}, 10\ns_lshl_b32 s4, {s_w}, 4\ns_add_u32 s3, s3, s4\ns_mul_i32 s3, s3, 1280\ns_mul_i32 s4, {s_c}, 320\ns_add_u32 s3, s3, s4")
    for i in range(5):
        d = f"v{vDWo(i)}"
        e(f"v_add_u32 {t[5]}, {64*i}, {vl}\nv_mul_u32_u24 {t[6]}, 3277, {t[5]}\nv_lshrrev_b32 {t[6]}, 16, {t[6]}")
        e(f"v_mul_u32_u24 {t[7]}, 20, {t[6]}\nv_sub_u32 {t[5]}, {t[5]}, {t[7]}")
        e(f"v_bfe_u32 {t[7]}, {t[6]}, 3, 1\nv_lshlrev_b32 {t[7]}, 1, {t[7]}\nv_xor_b32 {t[5]}, {t[5]}, {t[7]}")
        e(f"v_mul_u32_u24 {t[6]}, 1280, {t[6]}\nv_lshl_add_u32 {d}, {t[5]}, 4, {t[6]}\nv_add_u32 {d}, s3, {d}")
        if 0 < i < 4: e(f"v_subrev_u32 {d}, {1024*i}, {d}")
    e(f"s_and_b32 s3, s2, 7\ns_lshl_b32 s3, s3, 3\ns_add_u32 s3, s3, {s_gb}\ns_lshl_b32 s3, s3, 16\ns_add_u32 s3, s3, {cfg.pbase}")
    e(f"s_lshl_b32 s4, {s_w}, 11\ns_add_u32 {s_pg}, s3, s4")
    e(f"s_lshl_b32 s4, {s_c}, 1\ns_add_u32 s4, s4, {s_hh}\ns_lshl_b32 s4, s4, 1\ns_add_u32 s4, s4, {s_p}\ns_lshl_b32 s4, s4, 12\ns_add_u32 {s_pown}, s3, s4")
    e(f"s_lshl_b32 s3, {s_p}, 12\ns_add_u32 s3, s3, {SCR}\nv_add_u32 v{vRP}, s3, v{vL16}")
    e(f"s_lshl_b32 s3, {s_br}, 3\ns_add_u32 s3, s3, {s_gb}\ns_lshl_b32 {s_dbg}, s3, 4")
    e(f"s_lshl_b32 s3, s3, 2\ns_add_u32 s3, s3, {s_c}\ns_lshl_b32 s3, s3, 2")
    e(f"s_mul_i32 s4, {s_w}, 2560\ns_add_u32 s4, s4, {cfg.rbase}")
    e(f"s_add_u32 s5, s3, {s_oct}\ns_mul_i32 s5, s5, 30720\ns_add_u32 {s_rr}, s5, s4")
    for i in (1, 2, 3):
        e(f"s_xor_b32 s5, {s_oct}, {i}\ns_add_u32 s5, s5, s3\ns_mul_i32 s5, s5, 30720\ns_add_u32 s5, s5, s4\ns_add_u32 {s_rs[i]}, s5, {10240*(i-1)}")
    e(f"s_lshl_b32 s3, {s_gb}, 7\ns_lshl_b32 s4, {s_p}, 6\ns_add_u32 s3, s3, s4\ns_lshl_b32 s4, {s_oct}, 4\ns_add_u32 s3, s3, s4\ns_mul_i32 s3, s3, 2560")
    e(f"s_mul_i32 s4, {s_br}, 1280\ns_add_u32 s3, s3, s4\ns_mul_i32 s4, {s_c}, 320\ns_add_u32 s3, s3, s4\ns_mul_i32 s4, {s_hh}, 160\ns_add_u32 {s_out}, s3, s4")
    e(f"v_mul_u32_u24 v{vOutA}, 2560, {vm}\nv_lshl_add_u32 v{vOutA}, {vq}, 3, v{vOutA}")
    for hi in range(8):
        e(f"s_lshl_b32 s3, {s_c}, 1\ns_add_u32 s3, s3, {hi}\ns_and_b32 s3, s3, 7")
        e(f"s_lshl_b32 {sH(hi,0)}, s3, 13\ns_add_u32 {sH(hi,1)}, {sH(hi,0)}, 128")
        e(f"s_mul_i32 {sHW(hi,0)}, s3, 163840\ns_add_u32 {sHW(hi,1)}, {sHW(hi,0)}, 81920")
    for k in range(4): e(f"v_mov_b32 v{vPois+k}, -1")

    def rd_a(st):
        base = aslot(st); win = 1 if base >= WIN else 0; off = base - win * WIN
        r = []
        for tt in range(4):
            for ks in range(2):
                for j in range(2):
                    r.append(f"ds_read_b64_tr_b16 {q2('a', Af(st&1, tt, ks)+2*j)}, v{vA(win, tt)} offset:{off + ks*8192 + j*1024}")
        return r
    def rd_x(y, base):
        win = 1 if base >= WIN else 0; off = base - win * WIN
        return [f"ds_read_b128 {q4('a', Bf((y>>1)&1, 2*(y&1)+mt, ks))}, v{vB(win, ks)} offset:{off + mt*2048}" for mt in range(2) for ks in range(2)]
    def rd_k(n):
        return [f"ds_read_b64 {q2('a', Kf(n>>1, n&1, s)+2*j)}, v{vRK(s, j)}" for s in range(4) for j in range(2)]
    def rd_b(k):
        base = bslot(k); win = 1 if base >= WIN else 0; off = base - win * WIN; buf = k & 1
        v = {(bi, kt, ks): f"ds_read_b128 {q4('a', Vf(buf, bi, kt, ks))}, v{vRV(win, ks)} offset:{off + bi*4096 + kt*2048}"
             for bi in range(2) for kt in range(2) for ks in range(2)}
        w = [f"ds_read_b64_tr_b16 {q2('a', Wf(buf, nt, ks)+2*j)}, v{vRW(win, nt&1)} offset:{off + ks*10240 + j*1280 + 32*nt}"
             for nt in range(5) for ks in range(2) for j in range(2)]
        return list(v.values()) + w

    poison = [(f"buffer_store_dwordx4 {q4('v', vPois)}, v{vL16}, {sWs}, {s_pown} offen offset:{1024*i}{cfg.sc_st}", "PZ", []) for i in range(4)]
    for i in (1, 2, 3):
        poison += [(f"buffer_store_dwordx4 {q4('v', vPois)}, v{vL16}, {sWs}, {s_rs[i]} offen{cfg.sc_st}", "PZ", []),
                   (f"buffer_store_dwordx4 {q4('v', vPois)}, v{vL16}, {sWs}, {s_rs[i]} offen offset:1024{cfg.sc_st}", "PZ", []),
                   (f"buffer_store_dwordx2 {q2('v', vPois)}, v{vL8}, {sWs}, {s_rs[i]} offen offset:2048{cfg.sc_st}", "PZ", [])]
    psteps = list(cfg.poison_steps)
    pz = {s: poison[k::len(psteps)] for k, s in enumerate(psteps)}
    signal_step = max(psteps) + 5

    stamp()
    P.wait(["U0"]); e("s_barrier")
    stamp()
    for x in rd_a(0) + rd_x(0, aslot(5)) + rd_x(1, aslot(0)): e(x)
    P.wait(["U1"], lgkm=0); e("s_barrier")

    k_issue = {2: 1, 7: 2, 12: 3}; k_read = {1: 0, 6: 1, 11: 2, 16: 3}
    bpre = {14: dma_v(0), 15: dma_wo(0), 16: dma_v(1), 17: dma_wo(1), 18: dma_v(2) + dma_wo(2)[:2], 19: dma_wo(2)[2:] + dma_v(3)}
    w2 = dma_wo(2); bpre[19] = [(w2[2][0], w2[2][1], [])] + w2[3:] + dma_v(3)
    for s in range(20):
        ee, th = s >> 1, s & 1
        mf = []
        for tt in range(4):
            for i in range(4):
                d = q4('v', Qacc(4*th + tt, i))
                for ks in range(2):
                    mf.append(mfma(d, q4('a', Af(s&1, tt, ks)), q4('a', Bf(ee&1, i, ks)), "0" if (ee == 0 and ks == 0) else d))
        ds = []
        if s + 1 < 20: ds += rd_a(s + 1)
        if s + 2 < 20: ds += rd_x(s + 2, aslot(s + 1))
        if s == 19: ds += rd_b(0)
        if s in k_read: ds += rd_k(k_read[s])
        dma = []
        if s in k_issue: dma += dma_k(k_issue[s], f"K{k_issue[s]}")
        if s == 0: dma += dma_x(6, aslot(5), "U5")
        if s + 6 < 20: dma += dma_unit(s + 6)
        dma += bpre.get(s, [])
        dma += pz.get(s, [])
        if s == signal_step:
            e(f"s_cmp_lg_u32 {s_w}, 0\ns_cbranch_scc1 L_nosig")
            e(f"v_mov_b32 {t[5]}, 1\nv_mov_b32 {t[6]}, 0\ns_mov_b64 exec, 1")
            e(f"buffer_atomic_add {t[5]}, {t[6]}, {sDbg}, {s_dbg} offen sc1", count=False)
            e("s_mov_b64 exec, -1\nL_nosig:")
        interleave(P, mf, ds, dma)
        tags = []
        if s + 2 < 20: tags.append(f"U{s+2}")
        if s == 18: tags.append("B0")
        if s == 19: tags.append("B1")
        if s + 1 in k_read: tags.append(f"K{k_read[s+1]}")
        if s + 1 == signal_step: tags.append("PZ")
        P.wait(tags, lgkm=0); e("s_barrier")
        if s in (3, 7, 11, 15, 19): stamp()

    emit_dma(dma_wo(3))
    for s in range(4):
        for i in range(4):
            a, b = Qacc(2*s, i), Qacc(2*s + 1, i)
            e(f"v_cvt_pk_bf16_f32 v{a}, v{a}, v{a+1}\nv_cvt_pk_bf16_f32 v{a+1}, v{a+2}, v{a+3}")
            e(f"v_cvt_pk_bf16_f32 v{a+2}, v{b}, v{b+1}\nv_cvt_pk_bf16_f32 v{a+3}, v{b+2}, v{b+3}")
    for i in range(4):
        for kt in range(2):
            d = q4('v', Sacc(i, kt))
            for s in range(4):
                e(mfma(d, q4('a', Kf(i >> 1, kt, s)), q4('v', Qacc(2*s, i)), "0" if s == 0 else d))
    cst = struct.unpack("<I", struct.pack("<f", (128 ** -0.5) * math.log2(math.e)))[0]
    e(f"s_mov_b32 {s_cst}, {cst:#x}")
    M = lambda i: 96 + i; T = lambda i: 100 + i
    S = lambda i, k: Sacc(i, 0) + k
    def xlane(op):
        for sw in ("v_permlane32_swap_b32", "v_permlane16_swap_b32"):
            for i in range(4): e(f"v_mov_b32 v{T(i)}, v{M(i)}")
            for i in range(4): e(f"{sw} v{M(i)}, v{T(i)}")
            for i in range(4): e(f"{op} v{M(i)}, v{M(i)}, v{T(i)}")
    for i in range(4):
        e(f"v_max3_f32 v{M(i)}, v{S(i,0)}, v{S(i,1)}, v{S(i,2)}\nv_max3_f32 v{M(i)}, v{M(i)}, v{S(i,3)}, v{S(i,4)}")
        e(f"v_max3_f32 v{M(i)}, v{M(i)}, v{S(i,5)}, v{S(i,6)}\nv_max_f32 v{M(i)}, v{M(i)}, v{S(i,7)}")
    xlane("v_max_f32")
    for i in range(4): e(f"v_mul_f32 v{M(i)}, {s_cst}, v{M(i)}")
    for i in range(4):
        for k in range(8): e(f"v_fma_f32 v{S(i,k)}, v{S(i,k)}, {s_cst}, -v{M(i)}")
        for k in range(8): e(f"v_exp_f32 v{S(i,k)}, v{S(i,k)}")
    for i in range(4):
        e(f"v_add_f32 v{M(i)}, v{S(i,0)}, v{S(i,1)}\nv_add_f32 v{T(i)}, v{S(i,2)}, v{S(i,3)}")
        e(f"v_add_f32 v{M(i)}, v{M(i)}, v{S(i,4)}\nv_add_f32 v{T(i)}, v{T(i)}, v{S(i,5)}")
        e(f"v_add_f32 v{M(i)}, v{M(i)}, v{S(i,6)}\nv_add_f32 v{T(i)}, v{T(i)}, v{S(i,7)}")
        e(f"v_add_f32 v{M(i)}, v{M(i)}, v{T(i)}")
    xlane("v_add_f32")
    for i in range(4): e(f"v_rcp_f32 v{M(i)}, v{M(i)}")
    e(f"v_add_u32 v{T(0)}, {s_kscr}, v{vL16}")
    for i in range(4):
        for k in range(8): e(f"v_mul_f32 v{S(i,k)}, v{S(i,k)}, v{M(i)}")
        for k in range(4): e(f"v_cvt_pk_bf16_f32 v{vP+4*i+k}, v{S(i,2*k)}, v{S(i,2*k+1)}")
        for k in range(4): e(f"v_min_u32 v{vP+4*i+k}, -2, v{vP+4*i+k}")
        e(f"buffer_store_dwordx4 {q4('v', vP+4*i)}, v{vL16}, {sWs}, {s_pown} offen offset:{1024*i}{cfg.sc_st}", "PS")
        e(f"ds_write_b128 v{T(0)}, {q4('v', vP+4*i)} offset:{1024*i}")
    stamp()

    if cfg.stop != "A":
        order = [(bi, nt) for bi in (1, 0) for nt in range(5)]
        def vw(k):
            half, buf = k & 1, k & 1
            r = []
            for (bi, nt) in order:
                for kt in range(2):
                    d = q4('v', VWacc(bi, nt, kt))
                    for ks in range(2):
                        r.append(mfma(d, q4('a', Vf(buf, bi, kt, ks)), q4('a', Wf(buf, nt, ks)), "0" if (half == 0 and ks == 0) else d))
            return r
        def xs(h):
            r = []
            for (bi, nt) in order:
                for mt in (1, 0):
                    d = q4('v', Oacc(2*bi + mt, nt))
                    r.append(mfma(d, q4('v', VWf(bi, nt)), q4('v', vP + 4*(2*bi + mt)), "0" if h == 0 else d))
            return r
        def cvts(off):
            r = []
            for n, (bi, nt) in enumerate(order):
                for kt in range(2):
                    a = VWacc(bi, nt, kt); f = VWf(bi, nt) + 2*kt
                    g = off + 4*n + 2*kt + 1 + 4
                    r.append((g, f"v_cvt_pk_bf16_f32 v{f}, v{a}, v{a+1}"))
                    r.append((g, f"v_cvt_pk_bf16_f32 v{f+1}, v{a+2}, v{a+3}"))
            return r
        def rd_p(h):
            return [(f"ds_read_b128 {q4('v', vP+4*i)}, v{vRP} offset:{8192*(h&1) + 1024*i}", f"RP{h}") for i in range(4)]
        def pmax():
            r = [f"v_max3_u32 v{vChk}, v{vP}, v{vP+1}, v{vP+2}"]
            for k in range(3, 15, 2): r.append(f"v_max3_u32 v{vChk}, v{vChk}, v{vP+k}, v{vP+k+1}")
            r.append(f"v_max_u32 v{vChk}, v{vChk}, v{vP+15}")
            r.append(f"v_cmp_eq_u32 vcc, -1, v{vChk}")
            return r
        def pcheck(h, g0):
            r = [(g0, lambda PP: PP.wait_lg(f"RP{h}"))]
            if h >= 2:
                r += [(g0, x) for x in pmax()]
                r.append((g0 + 11, f"s_cbranch_vccnz L_pslow{h}\nL_pback{h}:"))
                sl = [f"L_pslow{h}:", f"s_mov_b32 {s_cnt}, 0", f"s_lshl_b32 s3, {s_hh}, 11", f"s_sub_u32 s3, {s_pg}, s3", f"s_add_u32 s3, s3, {sH(h,0)}",
                      f"L_ploop{h}:"]
                sl += [f"buffer_load_dwordx4 {q4('v', vP+4*i)}, v{vL16}, {sWs}, s3 offen offset:{1024*i}{cfg.sc_ld}" for i in range(4)]
                sl += ["s_waitcnt vmcnt(0)"] + pmax() + ["s_nop 4", f"s_cbranch_vccz L_pback{h}", "s_sleep 4", f"s_add_u32 {s_cnt}, {s_cnt}, 1",
                       f"s_cmp_lt_u32 {s_cnt}, {cfg.spin_cap}", f"s_cbranch_scc1 L_ploop{h}", f"s_branch L_pback{h}"]
                slow.extend(sl)
            return r

        left = []
        for k in range(16):
            h, half = k >> 1, k & 1
            x = xs(h - 1) if h >= 1 else []
            ds, dma, alu = [], [], [(0, a[1]) for a in left]
            if half == 0:
                mf = vw(k) + x[:10]
                if h >= 1:
                    ds += rd_p(h - 1); alu += pcheck(h - 1, 12)
                if h >= 2: dma += dma_p(h)
            else:
                mf = x[10:] + vw(k)
                alu += cvts(len(x[10:]))
            if k + 1 < 16: ds += rd_b(k + 1)
            if k + 4 < 16: dma += dma_v(k + 4) + dma_wo(k + 4)
            if k == 2:
                dma = [(f"buffer_load_dword v{vChk}, v{vT+6}, {sDbg}, {s_dbg} offen{cfg.sc_ld}", "CHK", [f"v_mov_b32 v{vT+6}, 0"])] + dma
            if k == 4:
                e(f"v_readfirstlane_b32 s3, v{vChk}\ns_cmp_lg_u32 s3, 16\ns_cbranch_scc1 L_cslow\nL_cback:")
                slow.extend(["L_cslow:", f"s_mov_b32 {s_cnt}, 0", "L_cloop:", "s_sleep 8",
                             f"buffer_load_dword v{vChk}, v{vT+6}, {sDbg}, {s_dbg} offen{cfg.sc_ld}", "s_waitcnt vmcnt(0)",
                             f"v_readfirstlane_b32 s3, v{vChk}", "s_nop 2", "s_cmp_eq_u32 s3, 16", "s_cbranch_scc1 L_cback",
                             f"s_add_u32 {s_cnt}, {s_cnt}, 1", f"s_cmp_lt_u32 {s_cnt}, {cfg.spin_cap}", "s_cbranch_scc1 L_cloop", "s_branch L_cback"])
            left = interleave(P, mf, ds, dma, alu)
            if half == 0: assert not left, left
            tags = []
            if k + 2 < 16: tags.append(f"B{k+2}")
            if half == 1 and h >= 2: tags.append(f"P{h}")
            if k == 3: tags.append("CHK")
            P.wait(tags, lgkm=0); e("s_barrier")
            if half == 1: stamp()
        for x in rd_p(7): e(x)
        for a in left: e(a[1])
        for a in pcheck(7, 0): e(a[1])
        for x in xs(7): e(x)
        stamp()
        for i in (3, 2, 1):
            b = 20 * i
            for k in range(10): e(f"v_cvt_pk_bf16_f32 v{b+k}, v{b+2*k}, v{b+2*k+1}")
            for k in range(10): e(f"v_min_u32 v{b+k}, -2, v{b+k}")
            e(f"buffer_store_dwordx4 {q4('v', b)}, v{vL16}, {sWs}, {s_rs[i]} offen{cfg.sc_st}")
            e(f"buffer_store_dwordx4 {q4('v', b+4)}, v{vL16}, {sWs}, {s_rs[i]} offen offset:1024{cfg.sc_st}")
            e(f"buffer_store_dwordx2 {q2('v', b+8)}, v{vL8}, {sWs}, {s_rs[i]} offen offset:2048{cfg.sc_st}")
        stamp()
        R = lambda i, k: 128 + 12 * (i - 1) + k
        e(f"s_add_u32 s4, {s_rr}, 10240\ns_add_u32 s5, {s_rr}, 20480\ns_mov_b32 {s_cnt}, 0")
        e("L_rloop:")
        for i, so in ((1, s_rr), (2, "s4"), (3, "s5")):
            e(f"buffer_load_dwordx4 {q4('v', R(i,0))}, v{vL16}, {sWs}, {so} offen{cfg.sc_ld}")
            e(f"buffer_load_dwordx4 {q4('v', R(i,4))}, v{vL16}, {sWs}, {so} offen offset:1024{cfg.sc_ld}")
            e(f"buffer_load_dwordx2 {q2('v', R(i,8))}, v{vL8}, {sWs}, {so} offen offset:2048{cfg.sc_ld}")
        e("s_waitcnt vmcnt(0)")
        rl = [R(i, k) for i in (1, 2, 3) for k in range(10)]
        e(f"v_max_u32 v{vChk}, v{rl[0]}, v{rl[1]}")
        for k in range(2, 30, 2): e(f"v_max3_u32 v{vChk}, v{vChk}, v{rl[k]}, v{rl[k+1]}")
        e(f"v_cmp_eq_u32 vcc, -1, v{vChk}\ns_nop 4\ns_cbranch_vccz L_rdone")
        e(f"s_add_u32 {s_cnt}, {s_cnt}, 1\ns_cmp_lt_u32 {s_cnt}, {cfg.spin_cap*4}\ns_cbranch_scc1 L_rloop")
        e("L_rdone:")
        if cfg.stamps:
            e(f"s_mov_b32 s6, {s_cnt}")
            stamp()
            e(f"v_writelane_b32 v{vTS}, s6, 63")
        e(f"s_mov_b32 {s_cst}, 0xffff0000")
        for i in (1, 2, 3):
            for k in range(10):
                e(f"v_lshlrev_b32 v{vT}, 16, v{R(i,k)}\nv_and_b32 v{vT+1}, {s_cst}, v{R(i,k)}")
                e(f"v_add_f32 v{2*k}, v{2*k}, v{vT}\nv_add_f32 v{2*k+1}, v{2*k+1}, v{vT+1}")
        for k in range(10): e(f"v_cvt_pk_bf16_f32 v{k}, v{2*k}, v{2*k+1}")
        for nt in range(5): e(f"buffer_store_dwordx2 {q2('v', 2*nt)}, v{vOutA}, {sOut}, {s_out} offen offset:{32*nt}{cfg.out_aux}")
    if cfg.stamps:
        e("s_waitcnt vmcnt(0)")
        stamp()
        e(f"s_lshl_b32 s3, s2, 2\ns_add_u32 s3, s3, {s_w}\ns_lshl_b32 s3, s3, 8\ns_add_u32 s3, s3, {cfg.tsbase}")
        e(f"v_lshrrev_b32 v{vT}, 2, v{vL16}")
        e(f"buffer_store_dword v{vTS}, v{vT}, {sWs}, s3 offen")
    e("L_end:\ns_endpgm")
    for x in slow: e(x, count=False)
    P.finalize()
    hdr = open(f"cdna_kernels/{NAME}.s.ref").read().split("; Override launch")[0]
    out = hdr + "; @launch grid=(256,1,1) block=(256,1,1) lds=163840\n"
    out += f'.amdgcn_target "amdgcn-amd-amdhsa--gfx950"\n.text\n.globl {NAME}_kernel\n.p2align 8\n.type {NAME}_kernel,@function\n'
    out += P.text()
    out += f""".section .rodata,"a"
.p2align 6
.amdhsa_kernel {NAME}_kernel
  .amdhsa_next_free_vgpr 512
  .amdhsa_next_free_sgpr 102
  .amdhsa_accum_offset 256
  .amdhsa_group_segment_fixed_size 0
  .amdhsa_kernarg_size 104
  .amdhsa_user_sgpr_count 2
  .amdhsa_user_sgpr_kernarg_segment_ptr 1
  .amdhsa_system_sgpr_workgroup_id_x 1
  .amdhsa_float_denorm_mode_32 3
  .amdhsa_float_denorm_mode_16_64 3
.end_amdhsa_kernel
"""
    return out, P

if __name__ == "__main__":
    cfg = Cfg()
    dst = f"cdna_kernels/{NAME}.s"
    for a in sys.argv[1:]:
        k, v = a.split("=", 1)
        if k == "o": dst = v
        elif k == "nt":
            for n in v.split(","):
                if n: setattr(cfg, "nt_" + n, " nt")
        else:
            cur = getattr(cfg, k)
            setattr(cfg, k, eval(v) if not isinstance(cur, str) and v != "A" else v.replace("_", " "))
    txt, P = build(cfg)
    open(dst, "w").write(txt)
    print(dst, "instructions:", len(P.ins), "pads:", P.pads)
```

```python
import re

REG = re.compile(r'\b([vas])(\d+)\b|\b([vas])\[(\d+):(\d+)\]')

def regs_of(op):
    out = set()
    for m in REG.finditer(op):
        if m.group(1):
            out.add((m.group(1), int(m.group(2))))
        else:
            for i in range(int(m.group(4)), int(m.group(5)) + 1):
                out.add((m.group(3), i))
    if re.search(r'\bvcc\b', op): out.add(('s', 'vcc'))
    if re.search(r'\bm0\b', op): out.add(('s', 'm0'))
    if re.search(r'\bexec\b', op): out.add(('s', 'exec'))
    return out

TRANS = ('v_exp_f32', 'v_log_f32', 'v_rcp_f32', 'v_rsq_f32', 'v_sqrt_f32')

class Ins:
    def __init__(self, text, tag=None):
        self.text = text.strip()
        self.tag = tag
        t = self.text.split(';')[0].strip()
        self.label = t.endswith(':')
        parts = t.split(None, 1)
        self.mn = parts[0] if parts else ''
        ops = [o.strip() for o in parts[1].split(',')] if len(parts) > 1 else []
        self.ops = ops
        mn = self.mn
        self.rd, self.wr = set(), set()
        self.srcC = set(); self.srcAB = set()
        if self.label or not mn:
            self.kind = 'label'
        elif mn.startswith('v_mfma'):
            self.kind = 'mfma'
            self.wr = regs_of(ops[0]); self.srcAB = regs_of(ops[1]) | regs_of(ops[2]); self.srcC = regs_of(ops[3])
            self.rd = self.srcAB | self.srcC
        elif mn.startswith('v_'):
            self.kind = 'valu'
            if mn.startswith('v_permlane') and 'swap' in mn:
                self.wr = regs_of(ops[0]) | regs_of(ops[1]); self.rd = set(self.wr)
            else:
                self.wr = regs_of(ops[0])
                for o in ops[1:]: self.rd |= regs_of(o)
                if mn.startswith(('v_fmac', 'v_dot2c')): self.rd |= self.wr
        elif mn.startswith('ds_'):
            self.kind = 'ds'
            if mn.startswith('ds_read'):
                self.wr = regs_of(ops[0]); self.rd = regs_of(ops[1])
            else:
                for o in ops: self.rd |= regs_of(o)
        elif mn.startswith(('buffer_', 'global_')):
            self.kind = 'vmem'
            if ' lds' in t or mn.startswith('global_load_lds'):
                for o in ops: self.rd |= regs_of(o)
                self.rd.add(('s', 'm0'))
            elif 'load' in mn:
                self.wr = regs_of(ops[0])
                for o in ops[1:]: self.rd |= regs_of(o)
            else:
                for o in ops: self.rd |= regs_of(o)
        elif mn in ('s_waitcnt', 's_barrier', 's_nop', 's_endpgm', 's_sleep', 's_setprio'):
            self.kind = 'ctl'
        elif mn.startswith(('s_branch', 's_cbranch')):
            self.kind = 'branch'
        elif mn.startswith(('s_load', 's_memtime', 's_memrealtime')):
            self.kind = 'smem'
            self.wr = regs_of(ops[0])
        elif mn.startswith('s_'):
            self.kind = 'salu'
            if mn.startswith(('s_cmp', 's_bitcmp')):
                for o in ops: self.rd |= regs_of(o)
            else:
                self.wr = regs_of(ops[0])
                for o in ops[1:]: self.rd |= regs_of(o)
                if 'saveexec' in mn: self.wr.add(('s', 'exec'))
        else:
            self.kind = 'dir'
    def states(self):
        if self.kind in ('label', 'dir'): return 0
        if self.mn == 's_nop': return int(self.ops[0], 0) + 1
        return 1
    def is_wide_store(self):
        return self.kind == 'vmem' and 'store' in self.mn and ('x4' in self.mn or 'x3' in self.mn)

def need(p, c):
    n = 0
    vec = lambda s: {r for r in s if r[0] in 'va'}
    sg = lambda s: {r for r in s if r[0] == 's'}
    if p.kind == 'mfma':
        passes = 8 if '32x32' in p.mn else 4
        big = 12 if passes == 8 else 8
        if c.kind == 'mfma':
            if p.wr & c.srcAB: n = max(n, big)
            if p.wr & c.srcC and p.wr != c.srcC: n = max(n, big - 2)
            if p.wr & c.wr and not (p.wr == c.srcC): n = max(n, big)
        elif c.kind in ('valu', 'ds', 'vmem'):
            if p.wr & (c.rd | c.wr): n = max(n, big)
            if c.kind == 'valu' and p.srcC & c.wr: n = max(n, passes - 1)
    if p.kind == 'valu':
        if c.kind == 'mfma' and vec(p.wr) & c.rd: n = max(n, 2)
        if c.kind == 'valu':
            if c.mn.startswith('v_permlane') and vec(p.wr) & c.rd: n = max(n, 2)
            if c.mn.startswith(('v_readfirstlane', 'v_readlane')) and vec(p.wr) & c.rd: n = max(n, 1)
            if p.mn.startswith(TRANS) and vec(p.wr) & c.rd: n = max(n, 1)
            if sg(p.wr) & c.rd: n = max(n, 2)
            if 'dpp' in c.text and vec(p.wr) & c.rd: n = max(n, 2)
            if p.mn.startswith('v_dot') and vec(p.wr) & (c.rd | c.wr): n = max(n, 3)
        if c.kind == 'vmem' and sg(p.wr) & c.rd: n = max(n, 5)
        if c.kind in ('salu', 'branch') and (sg(p.wr) & c.rd or (c.kind == 'branch' and ('s', 'vcc') in p.wr)): n = max(n, 2)
        if p.mn.startswith('v_dot') and c.kind in ('vmem', 'ds', 'mfma') and vec(p.wr) & c.rd: n = max(n, 3)
    if p.kind == 'salu':
        if ('s', 'm0') in p.wr and c.kind == 'vmem' and ('s', 'm0') in c.rd: n = max(n, 1)
    if p.is_wide_store():
        data = regs_of(p.ops[0])
        if data & c.wr: n = max(n, 2)
    return n

class Prog:
    def __init__(self):
        self.ins = []
        self.vm = []
        self.lg = []
        self.pads = 0
        self.pend = []
        self.auto = 0
    def e(self, text, tag=None, count=True):
        if callable(text):
            return text(self)
        if isinstance(text, tuple):
            text, tag = text
        for line in text.split('\n'):
            if not line.strip(): continue
            i = Ins(line, tag)
            if count:
                if i.mn == 's_waitcnt':
                    m = re.search(r'lgkmcnt\((\d+)\)', line)
                    if m: self.pend = [p for p in self.pend if p[0] >= len(self.lg) - int(m.group(1))]
                else:
                    hit = [p[0] for p in self.pend if p[1] & (i.rd | i.wr)]
                    if hit:
                        n = min(6, len(self.lg) - 1 - max(hit))
                        self.ins.append(Ins(f"s_waitcnt lgkmcnt({n})")); self.auto += 1
                        self.pend = [p for p in self.pend if p[0] >= len(self.lg) - n]
                if i.kind == 'ds' and i.wr: self.pend.append((len(self.lg), i.wr))
            self.ins.append(i)
            if i.kind == 'vmem' and count: self.vm.append(tag)
            if i.kind == 'ds' and count: self.lg.append(tag)
    def wait_lg(self, tag):
        last = max(k for k, t in enumerate(self.lg) if t == tag)
        self.e(f"s_waitcnt lgkmcnt({min(15, len(self.lg) - 1 - last)})")
    def vmN(self, tags):
        tags = set(tags)
        last = -1
        for k, t in enumerate(self.vm):
            if t in tags: last = k
        if last < 0: return None
        return len(self.vm) - 1 - last
    def wait(self, tags=(), lgkm=None):
        n = self.vmN(tags) if tags else None
        parts = []
        if n is not None:
            assert n <= 63, n
            parts.append(f"vmcnt({n})")
        if lgkm is not None: parts.append(f"lgkmcnt({lgkm})")
        if parts: self.e("s_waitcnt " + " ".join(parts))
    def finalize(self):
        out = []
        def scan(c, k, dist, depth=0):
            req = 0
            while k >= 0 and dist < 14:
                p = out[k]
                if p.label and depth < 4:
                    name = p.text.split(':')[0].strip()
                    for j in range(k - 1, max(k - 400, -1), -1):
                        if out[j].kind == 'branch' and out[j].ops and out[j].ops[-1] == name:
                            req = max(req, scan(c, j, dist, depth + 1))
                req = max(req, need(p, c) - dist)
                dist += p.states()
                k -= 1
            return req
        for c in self.ins:
            if c.kind not in ('label', 'dir'):
                req = scan(c, len(out) - 1, 0)
                j = len(out) - 2
                while req > 0 and j >= 0 and len(out) - j < 8:
                    if out[j].kind == 'mfma' and out[j + 1].kind == 'mfma':
                        for _ in range(2):
                            out.insert(j + 1, Ins("s_nop 0"))
                            r2 = scan(c, len(out) - 1, 0)
                            if r2 >= req:
                                del out[j + 1]; break
                            req = r2
                            if req == 0: break
                    j -= 1
                if req > 0:
                    out.append(Ins(f"s_nop {req-1}")); self.pads += 1
            out.append(c)
        self.ins = out
    def text(self):
        return "\n".join(("" if i.kind in ('label', 'dir') else "    ") + i.text for i in self.ins) + "\n"

NO_ALU_AFTER_DMA = 0

def interleave(P, mfmas, ds=(), dma=(), alu=(), ds_end=5, dma_span=None, ds_start=0, force=None, maxalu=None):
    n = len(mfmas)
    mem = [[] for _ in range(n)]
    pre = [[] for _ in range(n + 1)]
    lo, hi = dma_span if dma_span else (1, n)
    nd = len(dma)
    prevg = -1
    for k, (t, tag, pr) in enumerate(dma):
        g = lo + int((k + 0.5) * (hi - lo) / nd)
        g = min(max(g, prevg + 1), n - 1)
        mem[g].append((t, tag))
        for j, x in enumerate(reversed(pr)):
            gg = max(g - j, prevg + 1)
            pre[gg].insert(0, x)
        prevg = g
    free = [g for g in range(ds_start, max(n - ds_end, ds_start + 1)) if not mem[g]]
    ds = list(ds)
    if len(ds) <= len(free):
        for t, g in zip(ds, free): mem[g].append((t, None))
    else:
        per = [len(ds) // len(free)] * len(free)
        extra = len(ds) - sum(per)
        for k in range(extra): per[int((k + 0.5) * len(free) / extra)] += 1
        it = iter(ds)
        for g, c in zip(free, per):
            for _ in range(c): mem[g].append((next(it), None))
    qs = [list(q) for q in alu]
    for x in pre[0]: P.e(x)
    for g in range(n):
        P.e(mfmas[g])
        for (t, tag) in mem[g]: P.e(t, tag)
        room = (1 if mem[g] else 2) - len(pre[g + 1])
        if NO_ALU_AFTER_DMA and any(isinstance(t, str) and t.startswith('buffer') for (t, _) in mem[g]): room = 0
        for x in pre[g + 1]: P.e(x)
        fq = 0
        for qi, q in enumerate(qs):
            while room > 0 and q and q[0][0] <= g:
                P.e(q.pop(0)[1]); room -= 1
                if force and force[0] == qi: fq += 1
        if force:
            q = qs[force[0]]
            if q and q[0][0] <= g:
                left = max(force[1] - g, 1)
                want = -(-(len(q) + fq) // left)
                while fq < want and q and q[0][0] <= g:
                    P.e(q.pop(0)[1]); fq += 1
    return qs


def stream(P, mfmas, mem, alu, fixed):
    mem = list(mem); alu = list(alu)
    for g, m in enumerate(mfmas):
        last = max((k for k, a in enumerate(alu) if a[1] is not None and a[1] <= g), default=-1)
        for a in alu[:last + 1]:
            assert a[0] <= g + 4, (g, a)
            P.e(a[2])
        del alu[:last + 1]
        for x in fixed.get(g, []): P.e(x)
        P.e(m)
        room = 2
        if mem and mem[0][0] <= g:
            P.e(mem.pop(0)[1]); room = 1
        while room > 0 and alu and alu[0][0] <= g:
            P.e(alu.pop(0)[2]); room -= 1
    return mem, alu
```

```python
import sys, math, struct
import asmlib
from asmlib import Prog, interleave, stream

NAME = "concat_heads__gqa_block_cached__gqa_block_cached__near_ridge"

class Cfg:
    nt_x = ""; nt_wq = ""; nt_k = ""; nt_v = ""; nt_wo = ""
    sc_st = " sc1"; sc_ld = " sc1"
    out_aux = ""
    stamps = False
    pbase = 0
    rbase = 4 << 20
    tsbase = 16 << 20
    spin_cap = 20000
    probe = None
    order = "lead1"
    horder = "own2"
    rot_b = 1
    pro2 = 12
    quota = [7]*6 + [6]*8 + [4, 5, 4, 5, 4, 5]
    k_issue = (0, 5, 10, 15)
    k_lat = 3
    db = 3
    pro3 = 12
    kq = 0
    fine = 0
    nodefer = 0
    cpf = 1
    codesize = 36864
    recv_back = 30
    probe_back = 62
    bq = [9]*8 + [10, 11, 11, 13]
    E1 = 12
    E2 = 56
    XD = 8
    psleep = 1
    ppc = (0, 0, 0)
    x7_first = 24
    nl_step = 5
    nl_wait = 5
    poll = 1
    rsleep = 0
    nadma = 0
    probe_wg = None
    sm_end = 30

def chunk_orders(name):
    nat = list(range(10))
    if name == "nat": return [nat] * 4
    if name.startswith("lead"):
        L = int(name[4:]); r = []
        for ph in range(4):
            o = list(nat)
            for t in range(ph, 10 - L, 4): o[t], o[t + L] = o[t + L], o[t]
            r.append(o)
        return r
    if name == "rot2": return [nat[5 * (ph & 1):] + nat[:5 * (ph & 1)] for ph in range(4)]
    if name == "rot4": return [nat[k:] + nat[:k] for k in (0, 3, 5, 8)]
    raise ValueError(name)

def head_order(name, gb, c):
    ph = (c - gb) & 3
    if name == "own2":
        rot = (0, 1, 2, 3, 4, 5, 1, 4)[gb]
        return [(2*c + o) & 7 for o in [0, 1] + [2 + (k + rot) % 6 for k in range(6)]]
    if name == "own2n": return [(2*c + o) & 7 for o in range(8)]
    if name == "own1":
        E = [2*c] + [2 * ((c + 1 + (k + gb) % 3) & 3) for k in range(3)]
        pat = ("EE0EE123", "EEE1E023", "EEEE2013", "EEEE0312")[ph]
        it = iter(E)
        return [next(it) if ch == "E" else 2*int(ch) + 1 for ch in pat]
    if name == "lead":
        o = list(range(8))
        for t in range(ph, 7, 4): o[t], o[t+1] = o[t+1], o[t]
        return o
    if name == "nat": return list(range(8))
    raise ValueError(name)

sX, sK, sV, sWq, sWo, sOut, sDbg, sWs = (f"s[{b}:{b+3}]" for b in (8, 12, 16, 20, 24, 28, 32, 36))
sH = lambda hi: f"s{40 + hi}"
sHW = lambda hi, half: f"s{48 + hi*2 + half}"
s_perm = ["s68", "s69"]; s_hord = "s70"; s_e7 = "s66"; s_t0 = "s67"
s_w, s_br, s_oct, s_gb, s_c, s_p, s_hh = (f"s{i}" for i in range(72, 79))
s_m4, s_mx, s_mwo, s_kscr, s_mp = (f"s{i}" for i in range(79, 84))
s_xb = ["s84", "s85"]; s_kb = ["s86", "s87"]
s_oa, s_ox, s_ok = "s88", "s89", "s90"
s_pown, s_pg = "s91", "s92"
s_rs = [None, "s93", "s94", "s95"]; s_rr = "s96"; s_out = "s97"; s_dbg = "s98"; s_cst = "s99"
s_cnt = "s7"
vN = 230

def q4(f, b): return f"{f}[{b}:{b+3}]"
def q2(f, b): return f"{f}[{b}:{b+1}]"

Qacc = lambda t, i: (((t + 1) & 1) * 16 + (t >> 1) * 4 + i) * 4
vA = lambda win, t: 128 + win * 4 + t
vB = lambda win, ks: 136 + win * 2 + ks
vDWq = lambda i: 140 + i
vDx = lambda i: 144 + i
vDK = lambda i: 146 + i
vRK = lambda s, j: 150 + s * 2 + j
vS = 160
vP = 208
vM = 224
vT = 228
vL16, vL8 = 232, 233
vDV = lambda i: 234 + i
vDWo = lambda i: 238 + i
vRV = lambda win, ks: 243 + win * 2 + ks
vRW = lambda win, par: 247 + win * 2 + par
vRP, vChk, vOutA, vTS, vZero = 251, 252, 253, 254, 255
Af = lambda buf, t, ks: buf * 32 + (t * 2 + ks) * 4
Bf = lambda buf, i, ks: 64 + buf * 32 + (i * 2 + ks) * 4
Kf = lambda bi, kt, s: 192 + ((bi * 2 + kt) * 4 + s) * 4
BBUF = [[128 + 4 * k for k in range(16)] + [0, 4], [8 + 4 * k for k in range(18)]]
Vf = lambda buf, bi, kt, ks: BBUF[buf][(bi * 2 + kt) * 2 + ks]
Wf = lambda buf, nt, ks: BBUF[buf][8 + nt * 2 + ks]
Oacc = lambda i, nt: (i * 5 + nt) * 4
VWf = lambda bi, nt: 80 + (bi * 5 + nt) * 4
VWacc = lambda bi, nt, kt: 128 + ((bi * 5 + nt) * 2 + kt) * 4
Sacc = lambda i, kt: (i * 2 + kt) * 4

ASLOT = 24576; BSLOT = 36864; WIN = 73728; SCR = 147456
aslot = lambda u: ((u + 4) % 6) * ASLOT
bslot = lambda k: (k % 4) * BSLOT

def mfma(d, a, b, c):
    return f"v_mfma_f32_16x16x32_bf16 {d}, {a}, {b}, {c}"

def build(cfg):
    P = Prog(); e = P.e
    asmlib.NO_ALU_AFTER_DMA = cfg.nadma
    slow = []
    nstamp = [0]
    def stamp(last=False):
        if cfg.probe is not None:
            if nstamp[0] == cfg.probe: e(f"s_memrealtime s[100:101]\ns_waitcnt lgkmcnt(0)\ns_mov_b32 {s_t0}, s100")
            nstamp[0] += 1
            return
        if not cfg.stamps: return
        if cfg.stamps == 3 and nstamp[0] >= 1 and not last: return
        e(("s_memtime" if cfg.stamps == 2 else "s_memrealtime") + " s[100:101]\ns_waitcnt lgkmcnt(0)")
        e(f"v_writelane_b32 v{vTS}, s100, {nstamp[0]}")
        nstamp[0] += 1

    e(f"{NAME}_kernel:")
    e("s_cmp_ge_u32 s2, 256\ns_cbranch_scc1 L_end")
    if cfg.probe is not None: e(f"s_memrealtime s[100:101]\ns_waitcnt lgkmcnt(0)\ns_mov_b32 {s_t0}, s100")
    if cfg.stamps:
        e(f"v_mov_b32 v{vTS}, 0"); stamp()
    e("s_load_dwordx16 s[40:55], s[0:1], 0\ns_load_dwordx8 s[56:63], s[0:1], 64\ns_load_dwordx2 s[64:65], s[0:1], 96")
    e("s_getpc_b64 s[4:5]\nL_pc0:\ns_and_b32 s3, s2, 0xf8\ns_lshl_b32 s3, s3, 1\ns_add_u32 s3, s3, L_table-L_pc0\ns_load_dwordx4 s[68:71], s[4:5], s3")
    t = [f"v{vS+i}" for i in range(8)]
    vq, vm, vr, vcc_, vl = t[0], t[1], t[2], t[3], t[4]
    e(f"v_lshrrev_b32 {t[5]}, 6, v0\nv_and_b32 {vl}, 63, v0\nv_readfirstlane_b32 {s_w}, {t[5]}")
    e(f"s_bfe_u32 {s_br}, s2, 0x10002\ns_and_b32 {s_oct}, s2, 3\ns_lshr_b32 {s_gb}, s2, 5\ns_bfe_u32 {s_c}, s2, 0x20003")
    e(f"s_lshr_b32 {s_p}, {s_w}, 1\ns_and_b32 {s_hh}, {s_w}, 1")
    e(f"v_lshrrev_b32 {vq}, 4, {vl}\nv_and_b32 {vm}, 15, {vl}")
    e(f"s_lshl_b32 {s_m4}, {s_w}, 12")
    e(f"s_lshl_b32 s3, {s_w}, 11\ns_add_u32 {s_mx}, s3, 16384")
    e(f"s_and_b32 s3, {s_oct}, 1\ns_xor_b32 s3, s3, {s_hh}\ns_lshl_b32 s3, s3, 4")
    e(f"s_lshl_b32 s4, {s_gb}, 7\ns_add_u32 s3, s3, s4\ns_lshl_b32 s4, {s_p}, 6\ns_add_u32 s3, s3, s4")
    e(f"v_lshrrev_b32 {t[5]}, 3, {vl}\nv_add_u32 {t[5]}, s3, {t[5]}\nv_mul_u32_u24 {t[5]}, 1280, {t[5]}")
    e(f"v_and_b32 {t[6]}, 7, {vl}\nv_xor_b32 {t[6]}, {t[6]}, {vq}")
    e(f"v_lshl_add_u32 v{vDx(0)}, {t[6]}, 4, {t[5]}")
    e(f"v_xor_b32 v{vDx(1)}, 64, v{vDx(0)}\nv_add_u32 v{vDx(1)}, {8*1280-1024}, v{vDx(1)}")
    e(f"s_lshr_b32 s5, {s_oct}, 1\ns_mul_i32 {s_xb[0]}, s5, 40960\ns_sub_u32 {s_xb[1]}, 40960, {s_xb[0]}")
    e(f"s_lshl_b32 s3, {s_oct}, 2\ns_add_u32 s3, s3, {s_c}\ns_lshl_b32 s3, s3, 9")
    e(f"s_lshl_b32 s4, {s_w}, 17\ns_add_u32 s3, s3, s4")
    e(f"v_lshlrev_b32 {t[5]}, 13, {vq}\nv_add_u32 {t[5]}, s3, {t[5]}")
    e(f"v_and_b32 {t[6]}, 1, {vm}\nv_lshl_add_u32 {t[5]}, {t[6]}, 4, {t[5]}")
    e(f"v_lshrrev_b32 {t[6]}, 1, {vm}\nv_xor_b32 {t[6]}, {t[6]}, {vq}")
    e(f"v_lshrrev_b32 {t[7]}, 2, {t[6]}\nv_lshl_add_u32 v{vDWq(0)}, {t[7]}, 8, {t[5]}")
    e(f"v_and_b32 {t[7]}, 3, {t[6]}\nv_lshl_add_u32 v{vDWq(0)}, {t[7]}, 5, v{vDWq(0)}")
    e(f"v_add_u32 v{vDWq(1)}, {4*8192-1024}, v{vDWq(0)}")
    e(f"v_xor_b32 v{vDWq(2)}, 0x100, v{vDWq(0)}\nv_add_u32 v{vDWq(2)}, {2*(4*8192-1024)}, v{vDWq(2)}")
    e(f"v_add_u32 v{vDWq(3)}, {4*8192-1024}, v{vDWq(2)}")
    e("s_mov_b32 s10, 1310720\ns_mov_b32 s11, 0x20000\ns_mov_b32 s22, 5242880\ns_mov_b32 s23, 0x20000")
    e(f"s_cmp_eq_u32 {s_br}, 0")
    e("s_waitcnt lgkmcnt(0)")
    for dst, a, b in ((8, 40, 50), (20, 46, 56), (12, 42, 52), (16, 44, 54), (24, 48, 58)):
        e(f"s_cselect_b64 s[{dst}:{dst+1}], s[{a}:{a+1}], s[{b}:{b+1}]")
    stamp()

    bfe = lambda d, tt: f"s_bfe_u32 {d}, {s_perm[tt>>3]}, {0x40000 + 4*(tt&7):#x}"
    def dma_wq(st, tag):
        pre = [bfe(s_oa, st >> 1), f"s_lshl_b32 {s_oa}, {s_oa}, 19"] if st & 1 == 0 else [f"s_add_u32 {s_oa}, {s_oa}, 128"]
        return [(f"buffer_load_dwordx4 v{vDWq(i)}, {sWq}, {s_oa} offen offset:{1024*i}{cfg.nt_wq} lds", tag,
                 pre if i == 0 else [], f"s_add_u32 m0, {s_m4}, {aslot(st)}") for i in range(4)]
    def dma_x(y, base, tag):
        pre = ([bfe(s_e7, y >> 1), f"s_lshl_b32 {s_e7}, {s_e7}, 7"] if y & 1 == 0 else []) + [f"s_add_u32 {s_ox}, {s_xb[y&1]}, {s_e7}"]
        return [(f"buffer_load_dwordx4 v{vDx(i)}, {sX}, {s_ox} offen offset:{1024*i}{cfg.nt_x} lds", tag,
                 pre if i == 0 else [], f"s_add_u32 m0, {s_mx}, {base}") for i in range(2)]
    def dma_k(n):
        bi, kt = n >> 1, n & 1
        return [(f"buffer_load_dwordx4 v{vDK(i)}, {sK}, {s_ok} offen offset:{1024*i}{cfg.nt_k} lds", f"K{n}",
                 [f"s_add_u32 {s_ok}, {s_kb[bi]}, {4096*kt}"] if i == 0 else [], f"s_mov_b32 m0, {s_kscr}") for i in range(4)]
    def dma_v(k):
        h = 128 * (k & 1)
        return [(f"buffer_load_dwordx4 v{vDV(i)}, {sV}, {sH(k>>1)} offen offset:{1024*i + h}{cfg.nt_v} lds", f"B{k}",
                 [], f"s_add_u32 m0, {s_m4}, {bslot(k) - h}") for i in range(4)]
    def dma_wo(k):
        return [(f"buffer_load_dwordx4 v{vDWo(i)}, {sWo}, {sHW(k>>1, k&1)} offen offset:{1024*(i&3)}{cfg.nt_wo} lds", f"B{k}",
                 [], f"s_add_u32 m0, {s_mwo}, {bslot(k) + (4096 if i == 4 else 0)}") for i in range(5)]
    def dma_p(hi):
        return [(f"buffer_load_dwordx4 v{vL16}, {sWs}, {s_ok} offen offset:{1024*i}{cfg.sc_ld} lds", f"P{hi}",
                 [f"s_add_u32 {s_ok}, {s_pg}, {sH(hi)}"] if i == 0 else [], f"s_add_u32 m0, {s_mp}, {8192*(hi&1)}") for i in range(2)]
    cur_m0 = [None]
    def fix(lst):
        r = []
        for it in lst:
            tx, tag, pre = it[0], it[1], list(it[2])
            if len(it) > 3 and it[3] != cur_m0[0]:
                pre.append(it[3]); cur_m0[0] = it[3]
            r.append((tx, tag, pre))
        return r
    def emit_dma(lst):
        for (tx, tag, pre) in fix(lst):
            for x in pre: e(x)
            e(tx, tag)

    seq = [(-9, d) for d in dma_x(0, aslot(5), "U0")]
    for u in range(20):
        seq += [(u - 6, d) for d in dma_wq(u, f"U{u}")]
        if u + 1 < 20: seq += [(max(u - 6, 0 if u == 5 else -9), d) for d in dma_x(u + 1, aslot(u), f"U{u}")]
    for k, (ev, ew) in enumerate(((14, 15), (16, 16), (17, 18), (19, 19))[:cfg.db]):
        seq += [(ev, d) for d in dma_v(k)] + [(ew, d) for d in dma_wo(k)]
    def take(n, step):
        r = []
        while seq and len(r) < n and seq[0][0] <= step: r.append(seq.pop(0)[1])
        return r

    emit_dma(take(8, -1))

    e("s_mov_b64 s[32:33], s[62:63]\ns_mov_b32 s34, 256\ns_mov_b32 s35, 0x20000")
    e(f"s_lshl_b32 s3, {s_br}, 3\ns_add_u32 s3, s3, {s_gb}\ns_lshl_b32 {s_dbg}, s3, 4\nv_mov_b32 v{vZero}, 0")
    e(f"s_and_b32 s3, s2, 0x1b\ns_or_b32 s3, s3, {s_w}\ns_cbranch_scc1 L_nolead")
    e("s_memrealtime s[4:5]\ns_waitcnt lgkmcnt(0)")
    e("s_mul_i32 s5, s5, 0x7f4a7c15\ns_mul_hi_u32 s6, s4, 0x7f4a7c15\ns_add_u32 s5, s5, s6\ns_mul_i32 s6, s4, 0x9e3779b9\ns_add_u32 s5, s5, s6\ns_mul_i32 s4, s4, 0x7f4a7c15")
    e(f"v_mov_b32 v{vN}, s4\nv_mov_b32 v{vN+1}, s5\ns_mov_b64 exec, 1")
    e(f"buffer_store_dwordx2 {q2('v', vN)}, v{vZero}, {sDbg}, {s_dbg} offen{cfg.sc_st}", count=False)
    e("s_mov_b64 exec, -1\nL_nolead:")
    e(f"v_bfe_u32 {vr}, {vl}, 2, 2\nv_and_b32 {vcc_}, 3, {vl}")
    e(f"v_and_b32 {t[5]}, 1, {vq}\nv_lshl_or_b32 {t[5]}, {t[5]}, 2, {vr}")
    e(f"s_lshl_b32 s3, {s_hh}, 2\nv_xor_b32 {t[5]}, s3, {t[5]}")
    e(f"v_lshl_add_u32 {t[6]}, {vq}, 3, {vr}")
    e(f"v_lshlrev_b32 {t[7]}, 8, {t[6]}\nv_lshl_add_u32 {t[7]}, {vcc_}, 3, {t[7]}\nv_lshl_add_u32 v{vA(0,0)}, {t[5]}, 5, {t[7]}")
    for k in range(1, 4): e(f"v_xor_b32 v{vA(0,k)}, {32*k}, v{vA(0,0)}")
    for k in range(4): e(f"v_add_u32 v{vA(1,k)}, {WIN}, v{vA(0,k)}")
    e(f"v_lshrrev_b32 {t[5]}, 1, {vm}\nv_xor_b32 {t[5]}, {t[5]}, {vq}\nv_lshlrev_b32 {t[5]}, 4, {t[5]}\nv_lshl_add_u32 {t[5]}, {vm}, 7, {t[5]}")
    e(f"s_lshl_b32 s3, {s_p}, 12\ns_add_u32 s3, s3, 16384\nv_add_u32 v{vB(0,0)}, s3, {t[5]}\nv_xor_b32 v{vB(0,1)}, 64, v{vB(0,0)}")
    e(f"s_lshl_b32 s3, {s_p}, 13\nv_add_u32 v{vRV(0,0)}, s3, {t[5]}")
    for k in range(2): e(f"v_add_u32 v{vB(1,k)}, {WIN}, v{vB(0,k)}")
    e("s_mov_b32 s14, 8388608\ns_mov_b32 s15, 0x20000")
    e(f"s_lshl_b32 s3, {s_hh}, 1\ns_add_u32 s3, s3, {s_p}\ns_lshl_b32 s3, s3, 12\ns_add_u32 {s_kscr}, s3, {SCR}")
    e(f"s_lshl_b32 s3, {s_gb}, 1\ns_add_u32 s3, s3, {s_p}\ns_lshl_b32 s3, s3, 19")
    e(f"s_lshl_b32 s4, {s_oct}, 2\ns_add_u32 s4, s4, {s_c}\ns_lshl_b32 s4, s4, 1\ns_add_u32 s4, s4, {s_hh}\ns_lshl_b32 s4, s4, 13\ns_add_u32 s3, s3, s4")
    e(f"s_lshr_b32 s5, {s_oct}, 1\ns_lshl_b32 s5, s5, 18\ns_add_u32 {s_kb[0]}, s3, s5\ns_xor_b32 {s_kb[1]}, {s_kb[0]}, 0x40000")
    e(f"v_xor_b32 {t[6]}, {vm}, {vq}\nv_lshlrev_b32 {t[6]}, 4, {t[6]}\nv_lshl_add_u32 v{vDK(0)}, {vq}, 8, {t[6]}")
    for i in range(1, 4): e(f"v_xor_b32 v{vDK(i)}, {64*i}, v{vDK(0)}")
    if cfg.cpf:
        e("s_getpc_b64 s[4:5]\nL_pc:")
        e(f"s_sub_u32 s4, s4, L_pc-{NAME}_kernel\ns_subb_u32 s5, s5, 0")
        e(f"s_lshr_b32 s3, s2, 3\ns_and_b32 s3, s3, 7\ns_lshl_b32 s3, s3, 2\ns_add_u32 s3, s3, {s_w}\ns_lshl_b32 s3, s3, 11")
        e(f"v_lshl_add_u32 {t[5]}, {vm}, 7, s3\nv_min_u32 {t[5]}, L_last-{NAME}_kernel, {t[5]}")
        e(f"global_load_dword v168, {t[5]}, s[4:5]", "CPF")
    emit_dma(take(cfg.pro2, -1))

    D = []
    def d(x): D.extend(x.split("\n"))
    d(f"v_lshlrev_b32 v{vL16}, 4, {vl}")
    for dst, a, size in ((36, 64, 268435456), (28, 60, 2621440)):
        d(f"s_mov_b64 s[{dst}:{dst+1}], s[{a}:{a+1}]\ns_mov_b32 s{dst+2}, {size}\ns_mov_b32 s{dst+3}, 0x20000")
    d(f"s_and_b32 s3, s2, 7\ns_lshl_b32 s3, s3, 3\ns_add_u32 s3, s3, {s_gb}\ns_lshl_b32 s3, s3, 16\ns_add_u32 s3, s3, {cfg.pbase}")
    d(f"s_lshl_b32 s4, {s_w}, 11\ns_add_u32 {s_pg}, s3, s4\ns_add_u32 {s_mp}, s4, {SCR}")
    d(f"s_lshl_b32 s4, {s_c}, 1\ns_add_u32 s4, s4, {s_hh}\ns_lshl_b32 s4, s4, 1\ns_add_u32 s4, s4, {s_p}\ns_lshl_b32 s4, s4, 12\ns_add_u32 {s_pown}, s3, s4")
    d(f"v_lshrrev_b32 {t[5]}, 1, {vq}\nv_xor_b32 {t[5]}, {t[5]}, {vm}\nv_lshlrev_b32 {t[5]}, 4, {t[5]}\nv_lshl_add_u32 {t[5]}, {vm}, 8, {t[5]}")
    d(f"v_and_b32 {t[6]}, 1, {vq}\nv_lshl_add_u32 {t[5]}, {t[6]}, 3, {t[5]}\nv_add_u32 v{vRK(0,0)}, {s_kscr}, {t[5]}")
    for k in range(1, 8): d(f"v_xor_b32 v{vRK(0,0)+k}, {32*k}, v{vRK(0,0)}")
    n_early = len(D)
    d(f"s_lshl_b32 s3, {s_br}, 3\ns_add_u32 s3, s3, {s_gb}")
    d(f"s_lshl_b32 s3, s3, 2\ns_add_u32 s3, s3, {s_c}\ns_lshl_b32 s3, s3, 2")
    d(f"s_mul_i32 s4, {s_w}, 3072\ns_add_u32 s4, s4, {cfg.rbase}")
    d(f"s_add_u32 s5, s3, {s_oct}\ns_mul_i32 s5, s5, 36864\ns_add_u32 {s_rr}, s5, s4")
    for i in (1, 2, 3):
        d(f"s_xor_b32 s5, {s_oct}, {i}\ns_add_u32 s5, s5, s3\ns_mul_i32 s5, s5, 36864\ns_add_u32 s5, s5, s4\ns_add_u32 {s_rs[i]}, s5, {12288*(i-1)}")
    d("s_mov_b32 s18, 8388608\ns_mov_b32 s19, 0x20000\ns_mov_b32 s26, 5242880\ns_mov_b32 s27, 0x20000")
    d(f"s_mul_i32 s3, {s_w}, 5120\ns_add_u32 {s_mwo}, s3, 16384")
    d(f"v_lshl_add_u32 {t[6]}, {vq}, 3, {vr}")
    d(f"v_mul_u32_u24 {t[7]}, 320, {t[6]}\nv_lshl_add_u32 {t[7]}, {vcc_}, 3, {t[7]}")
    d(f"s_mul_i32 s3, {s_hh}, 160\ns_add_u32 s3, s3, 16384\nv_add_u32 {t[7]}, s3, {t[7]}")
    d(f"s_lshl_b32 s3, {s_hh}, 6\ns_sub_u32 s3, 32, s3")
    d(f"v_and_b32 {t[5]}, 1, {vq}\nv_mul_lo_u32 {t[5]}, {t[5]}, s3")
    d(f"v_add_u32 v{vRW(0,0)}, {t[7]}, {t[5]}\nv_sub_u32 v{vRW(0,1)}, {t[7]}, {t[5]}")
    d(f"v_xor_b32 v{vRV(0,1)}, 64, v{vRV(0,0)}")
    for k in range(2): d(f"v_add_u32 v{vRW(1,k)}, {WIN}, v{vRW(0,k)}\nv_add_u32 v{vRV(1,k)}, {WIN}, v{vRV(0,k)}")
    d(f"s_lshr_b32 s5, {s_oct}, 1\ns_xor_b32 s5, s5, {s_w}\ns_lshl_b32 s3, {s_gb}, 2\ns_add_u32 s3, s3, s5\ns_lshl_b32 s3, s3, 18")
    d(f"s_lshl_b32 s4, {s_oct}, 16\ns_add_u32 s3, s3, s4")
    d(f"v_lshrrev_b32 {t[5]}, 3, {vl}\nv_lshlrev_b32 {t[5]}, 8, {t[5]}\nv_add_u32 {t[5]}, s3, {t[5]}")
    d(f"v_and_b32 {t[6]}, 7, {vl}\nv_xor_b32 {t[6]}, {t[6]}, {vq}\nv_lshl_add_u32 v{vDV(0)}, {t[6]}, 4, {t[5]}")
    d(f"v_xor_b32 v{vDV(1)}, 64, v{vDV(0)}\nv_add_u32 v{vDV(1)}, 1024, v{vDV(1)}")
    d(f"v_add_u32 v{vDV(2)}, 2048, v{vDV(0)}\nv_add_u32 v{vDV(3)}, 2048, v{vDV(1)}")
    d(f"s_lshl_b32 s3, {s_oct}, 10\ns_lshl_b32 s4, {s_w}, 4\ns_add_u32 s3, s3, s4\ns_mul_i32 s3, s3, 1280\ns_mul_i32 s4, {s_c}, 320\ns_add_u32 s3, s3, s4")
    for i in range(5):
        dd = f"v{vDWo(i)}"
        d(f"v_add_u32 {t[5]}, {64*i}, {vl}\nv_mul_u32_u24 {t[6]}, 3277, {t[5]}\nv_lshrrev_b32 {t[6]}, 16, {t[6]}")
        d(f"v_mul_u32_u24 {t[7]}, 20, {t[6]}\nv_sub_u32 {t[5]}, {t[5]}, {t[7]}")
        d(f"v_bfe_u32 {t[7]}, {t[6]}, 3, 1\nv_lshlrev_b32 {t[7]}, 1, {t[7]}\nv_xor_b32 {t[5]}, {t[5]}, {t[7]}")
        d(f"v_mul_u32_u24 {t[6]}, 1280, {t[6]}\nv_lshl_add_u32 {dd}, {t[5]}, 4, {t[6]}\nv_add_u32 {dd}, s3, {dd}")
        if 0 < i < 4: d(f"v_subrev_u32 {dd}, {1024*i}, {dd}")
    for hi in range(8):
        d(f"s_bfe_u32 s3, {s_hord}, {0x40000 + 4*hi:#x}")
        d(f"s_lshl_b32 {sH(hi)}, s3, 13\ns_mul_i32 {sHW(hi,0)}, s3, 163840\ns_add_u32 {sHW(hi,1)}, {sHW(hi,0)}, 81920")
    d(f"s_lshl_b32 s3, {s_p}, 12\ns_add_u32 s3, s3, {SCR}\nv_add_u32 v{vRP}, s3, v{vL16}")
    d(f"s_lshl_b32 s3, {s_gb}, 7\ns_lshl_b32 s4, {s_p}, 6\ns_add_u32 s3, s3, s4\ns_lshl_b32 s4, {s_oct}, 4\ns_add_u32 s3, s3, s4\ns_mul_i32 s3, s3, 2560")
    d(f"s_mul_i32 s4, {s_br}, 1280\ns_add_u32 s3, s3, s4\ns_mul_i32 s4, {s_c}, 320\ns_add_u32 s3, s3, s4\ns_mul_i32 s4, {s_hh}, 160\ns_add_u32 {s_out}, s3, s4")
    d(f"v_min_u32 {t[5]}, 2, {vq}\nv_mul_u32_u24 {t[5]}, 12288, {t[5]}\nv_lshl_add_u32 {t[5]}, {vcc_}, 4, {t[5]}\nv_add_u32 v{vL8}, {12 + 1024*cfg.ppc[1]}, {t[5]}")
    if cfg.ppc[0] != cfg.ppc[1]:
        d(f"v_min_u32 {t[5]}, 1, {vq}\nv_xor_b32 {t[5]}, 1, {t[5]}\nv_mul_i32_i24 {t[5]}, {1024*(cfg.ppc[0]-cfg.ppc[1])}, {t[5]}\nv_add_u32 v{vL8}, v{vL8}, {t[5]}")
    d(f"v_mul_u32_u24 v{vOutA}, 2560, {vm}\nv_lshl_add_u32 v{vOutA}, {vq}, 3, v{vOutA}")
    cst = struct.unpack("<I", struct.pack("<f", (128 ** -0.5) * math.log2(math.e)))[0]
    d(f"s_mov_b32 {s_cst}, {cst:#x}\nv_add_u32 v{vT}, {s_kscr}, v{vL16}")
    n_all = len(D)
    DQ = [(0, x) for x in D]
    if cfg.nodefer:
        for x in D: e(x)
        DQ = []

    def rd_a(st):
        base = aslot(st); win = 1 if base >= WIN else 0; off = base - win * WIN
        return [f"ds_read_b64_tr_b16 {q2('a', Af(st&1, tt, ks)+2*j)}, v{vA(win, tt)} offset:{off + ks*8192 + j*1024}"
                for tt in range(4) for ks in range(2) for j in range(2)]
    def rd_x(y, base):
        win = 1 if base >= WIN else 0; off = base - win * WIN
        return [f"ds_read_b128 {q4('a', Bf((y>>1)&1, 2*(y&1)+mt, ks))}, v{vB(win, ks)} offset:{off + mt*2048}" for mt in range(2) for ks in range(2)]
    def rd_k(n):
        return [f"ds_read_b64 {q2('a', Kf(n>>1, n&1, s)+2*j)}, v{vRK(s, j)}" for s in range(4) for j in range(2)]
    def rd_b(k):
        base = bslot(k); win = 1 if base >= WIN else 0; off = base - win * WIN; buf = k & 1
        v = [f"ds_read_b128 {q4('a', Vf(buf, bi, kt, ks))}, v{vRV(win, ks)} offset:{off + bi*4096 + kt*2048}"
             for bi in range(2) for kt in range(2) for ks in range(2)]
        w = [f"ds_read_b64_tr_b16 {q2('a', Wf(buf, nt, ks)+2*j)}, v{vRW(win, nt&1)} offset:{off + ks*10240 + j*1280 + 32*nt}"
             for nt in range(5) for ks in range(2) for j in range(2)]
        return v + w

    nonce_load = (f"buffer_load_dwordx2 {q2('v', vN)}, v{vZero}, {sDbg}, {s_dbg} offen{cfg.sc_ld}", "NL", [])
    def spin(name, load, test, br_ok):
        slow.extend([f"L_{name}slow:", f"s_mov_b32 {s_cnt}, 0", f"L_{name}loop:", "s_sleep 2", load, "s_waitcnt vmcnt(0)", test, "s_nop 4",
                     f"{br_ok} L_{name}back", f"s_add_u32 {s_cnt}, {s_cnt}, 1", f"s_cmp_lt_u32 {s_cnt}, {cfg.spin_cap}",
                     f"s_cbranch_scc1 L_{name}loop", f"s_branch L_{name}back"])
    def nonce_test():
        tst = f"v_cmp_eq_u64 vcc, 0, {q2('v', vN)}"
        spin("n", nonce_load[0], tst, "s_cbranch_vccz")
        r = [tst, "s_nop 0", "s_nop 0", "s_cbranch_vccnz L_nslow\nL_nback:",
             f"v_and_b32 v{vZero}, 48, v{vL16}", f"v_lshrrev_b64 {q2('v', vN)}, v{vZero}, {q2('v', vN)}",
             f"v_lshlrev_b32 v{vN}, 16, v{vN}", f"v_lshrrev_b32 v{vN+1}, 8, v{vN}", f"v_and_b32 v{vN+1}, 0xff00, v{vN+1}",
             f"v_and_b32 v{vZero}, 0xff000000, v{vN}", f"v_or_b32 v{vN+1}, v{vN+1}, v{vZero}"]
        for k in range(4): r += [f"v_lshlrev_b32 v{vM+k}, {2*k}, v{vN+1}", f"v_and_b32 v{vM+k}, 0xc000c000, v{vM+k}"]
        return r

    stamp()
    P.wait(["U0"]); e("s_barrier")
    stamp()
    for x in rd_x(0, aslot(5)) + rd_a(0) + rd_x(1, aslot(0)): e(x)
    emit_dma(take(cfg.pro3, -1))
    P.wait(["U1"], lgkm=0); e("s_barrier")

    def qcvt(s, i):
        a, b = Qacc(2*s, i), Qacc(2*s + 1, i)
        return [f"v_cvt_pk_bf16_f32 v{a}, v{a}, v{a+1}", f"v_cvt_pk_bf16_f32 v{a+1}, v{a+2}, v{a+3}",
                f"v_cvt_pk_bf16_f32 v{a+2}, v{b}, v{b+1}", f"v_cvt_pk_bf16_f32 v{a+3}, v{b+2}, v{b+3}"]
    k_issue = {s: n for n, s in enumerate(cfg.k_issue)}
    k_read = {s + cfg.k_lat + 1: n for n, s in enumerate(cfg.k_issue)}
    assert max(k_read) <= 19
    for s in range(20):
        ee, th = s >> 1, s & 1
        mf = []
        for tt in range(4):
            for i in range(4):
                dd = q4('v', Qacc(4*th + tt, i))
                for ks in range(2):
                    mf.append(mfma(dd, q4('a', Af(s&1, tt, ks)), q4('a', Bf(ee&1, i, ks)), "0" if (ee == 0 and ks == 0) else dd))
        ds = []
        if s + 1 < 20: ds += rd_a(s + 1)
        if s + 2 < 20: ds += rd_x(s + 2, aslot(s + 1))
        if s == 19: ds += rd_b(0)
        if s in k_read:
            assert n_all - len(DQ) >= n_early
            ds += rd_k(k_read[s])
        qt = cfg.quota[s] if isinstance(cfg.quota, (list, tuple)) else cfg.quota
        dma = take(qt - (cfg.kq if s in k_issue else 0), s)
        if s in k_issue: dma += dma_k(k_issue[s])
        if s == cfg.nl_step: dma += [nonce_load]
        if s == cfg.nl_step + cfg.nl_wait: DQ = DQ + [(0, x) for x in nonce_test()]
        if s >= 14: assert not DQ
        if s == 19: DQ = [(0, x) for i in range(4) for sx in (0, 1) for x in qcvt(sx, i)]
        (DQ,) = interleave(P, mf, ds, fix(dma), [DQ], force=(0, 32) if s == 19 else None)
        tags = []
        if s + 2 < 20: tags.append(f"U{s+2}")
        if s == 18: tags.append("B0")
        if s == 19: tags.append("B1")
        if s + 1 in k_read: tags.append(f"K{k_read[s+1]}")
        if s + 1 == cfg.nl_step + cfg.nl_wait: tags.append("NL")
        for tg in tags: assert not any(it[1][1] == tg for it in seq), (s, tg)
        P.wait(tags, lgkm=0); e("s_barrier")
        if s in (3, 7, 11, 15, 19) or cfg.fine: stamp()
    assert not DQ

    def smf(ss):
        r = []
        for i in range(4):
            for kt in range(2):
                dd = q4('v', Sacc(i, kt))
                for s in ss: r.append(mfma(dd, q4('a', Kf(i >> 1, kt, s)), q4('v', Qacc(2*s, i)), "0" if s == 0 else dd))
        return r
    M = lambda i: 32 + i; T = lambda i: 36 + i
    S = lambda i, k: Sacc(i, 0) + k
    SM = []
    def sm(g, x): SM.extend((g, y) for y in (x.split("\n") if isinstance(x, str) else [x]))
    def xlane(op, mid):
        sm(0, f"v_permlane32_swap_b32 v{M(0)}, v{M(1)}\nv_permlane32_swap_b32 v{M(2)}, v{M(3)}")
        sm(0, f"{op} v{M(0)}, v{M(0)}, v{M(1)}\n{op} v{M(2)}, v{M(2)}, v{M(3)}")
        sm(0, f"v_permlane16_swap_b32 v{M(0)}, v{M(2)}\n{op} v{M(0)}, v{M(0)}, v{M(2)}")
        sm(0, mid)
        sm(0, f"v_mov_b32 v{M(2)}, v{M(0)}\nv_permlane16_swap_b32 v{M(0)}, v{M(2)}")
        sm(0, f"v_mov_b32 v{M(1)}, v{M(0)}\nv_mov_b32 v{M(3)}, v{M(2)}")
        sm(0, f"v_permlane32_swap_b32 v{M(0)}, v{M(1)}\nv_permlane32_swap_b32 v{M(2)}, v{M(3)}")
    for i in range(4):
        g = 16 + 4 * i + 3 + 5
        sm(g, f"v_max3_f32 v{M(i)}, v{S(i,0)}, v{S(i,1)}, v{S(i,2)}\nv_max3_f32 v{M(i)}, v{M(i)}, v{S(i,3)}, v{S(i,4)}")
        sm(g, f"v_max3_f32 v{M(i)}, v{M(i)}, v{S(i,5)}, v{S(i,6)}\nv_max_f32 v{M(i)}, v{M(i)}, v{S(i,7)}")
    xlane("v_max_f32", f"v_mul_f32 v{M(0)}, {s_cst}, v{M(0)}")
    for i in range(4):
        for k in range(9):
            if k < 8: sm(0, f"v_fma_f32 v{S(i,k)}, v{S(i,k)}, {s_cst}, -v{M(i)}")
            if k > 0: sm(0, f"v_exp_f32 v{S(i,k-1)}, v{S(i,k-1)}")
    for i in range(4):
        sm(0, f"v_add_f32 v{M(i)}, v{S(i,0)}, v{S(i,1)}\nv_add_f32 v{T(i)}, v{S(i,2)}, v{S(i,3)}")
        sm(0, f"v_add_f32 v{M(i)}, v{M(i)}, v{S(i,4)}\nv_add_f32 v{T(i)}, v{T(i)}, v{S(i,5)}")
        sm(0, f"v_add_f32 v{M(i)}, v{M(i)}, v{S(i,6)}\nv_add_f32 v{T(i)}, v{T(i)}, v{S(i,7)}")
        sm(0, f"v_add_f32 v{M(i)}, v{M(i)}, v{T(i)}")
    xlane("v_add_f32", f"v_rcp_f32 v{M(0)}, v{M(0)}")
    for i in range(4):
        for k in range(8): sm(0, f"v_mul_f32 v{S(i,k)}, v{S(i,k)}, v{M(i)}")
        for k in range(4): sm(0, f"v_cvt_pk_bf16_f32 v{vP+4*i+k}, v{S(i,2*k)}, v{S(i,2*k+1)}")
        for k in range(4): sm(0, f"v_xor_b32 v{S(i,k)}, v{vM+k}, v{vP+4*i+k}")
        sm(0, (f"buffer_store_dwordx4 {q4('v', S(i,0))}, v{vL16}, {sWs}, {s_pown} offen offset:{1024*i}{cfg.sc_st}", "PS"))
        sm(0, f"ds_write_b128 v{vT}, {q4('v', vP+4*i)} offset:{1024*i}")

    order = [(bi, nt) for bi in (1, 0) for nt in range(5)]
    def vw(k):
        half, buf = k & 1, k & 1
        r = []
        for (bi, nt) in order:
            for kt in range(2):
                dd = q4('v', VWacc(bi, nt, kt))
                for ks in range(2):
                    r.append(mfma(dd, q4('a', Vf(buf, bi, kt, ks)), q4('a', Wf(buf, nt, ks)), "0" if (half == 0 and ks == 0) else dd))
        return r
    def xs(h):
        r = []
        for i in (3, 2, 1, 0):
            for nt in range(5):
                dd = q4('v', Oacc(i, nt))
                r.append(mfma(dd, q4('v', VWf(i >> 1, nt)), q4('v', vP + 4*i), "0" if h == 0 else dd))
        return r
    def cvts(off):
        r = []
        for n, (bi, nt) in enumerate(order):
            for kt in range(2):
                a = VWacc(bi, nt, kt); f = VWf(bi, nt) + 2*kt
                g = off + 4*n + 2*kt + 1 + 4
                r.append((g, f"v_cvt_pk_bf16_f32 v{f}, v{a}, v{a+1}"))
                r.append((g, f"v_cvt_pk_bf16_f32 v{f+1}, v{a+2}, v{a+3}"))
        return r
    def rd_p(h):
        return [(f"ds_read_b128 {q4('v', vP+4*i)}, v{vRP} offset:{8192*(h&1) + 1024*i}", f"RP{h}") for i in range(4)]
    def pmax():
        r = []
        for k in range(16):
            r.append(f"v_xor_b32 v{vP+k}, v{vM+(k&3)}, v{vP+k}")
            if k == 1: r.append(f"v_or_b32 v{vChk}, v{vP}, v{vP+1}")
            elif k & 1: r.append(f"v_or3_b32 v{vChk}, v{vChk}, v{vP+k-1}, v{vP+k}")
        return r + [f"v_and_b32 v{vChk}, 0xc000c000, v{vChk}", f"v_cmp_ne_u32 vcc, 0, v{vChk}"]
    def pcheck(h, g0):
        r = [(g0, lambda PP: PP.wait_lg(f"RP{h}"))]
        if h >= 2:
            r += [(g0, x) for x in pmax()]
            r.append((g0, f"s_cbranch_vccnz L_pslow{h}\nL_pback{h}:"))
            sl = [f"L_pslow{h}:", f"s_mov_b32 {s_cnt}, 0", f"s_lshl_b32 s3, {s_hh}, 11", f"s_sub_u32 s3, {s_pg}, s3", f"s_add_u32 s3, s3, {sH(h)}",
                  f"L_ploop{h}:"]
            sl += [f"buffer_load_dwordx4 {q4('v', vP+4*i)}, v{vL16}, {sWs}, s3 offen offset:{1024*i}{cfg.sc_ld}" for i in range(4)]
            sl += ["s_waitcnt vmcnt(0)"] + pmax() + ["s_nop 4", f"s_cbranch_vccz L_pback{h}", "s_sleep 4", f"s_add_u32 {s_cnt}, {s_cnt}, 1",
                   f"s_cmp_lt_u32 {s_cnt}, {cfg.spin_cap}", f"s_cbranch_scc1 L_ploop{h}", f"s_branch L_pback{h}"]
            slow.extend(sl)
        return r

    left = []
    bseq = []
    for k in range(cfg.db, 16): bseq += [(k - 4, d) for d in dma_v(k) + dma_wo(k)]
    def takeb(n, k):
        r = []
        while bseq and len(r) < n and bseq[0][0] <= k: r.append(bseq.pop(0)[1])
        return r
    for k in range(12):
        h, half = k >> 1, k & 1
        x = xs(h - 1) if h >= 1 else []
        ds, dma, alu = [], [], [(0, a[1]) for a in left]
        kw = {}
        if k == 0:
            mf = smf((0, 1)) + smf((2, 3)) + vw(0)
            alu = [(0, y) for i in range(4) for sx in (2, 3) for y in qcvt(sx, i)]
            dma += take(99, 99)
            kw = dict(ds_start=16, dma_span=(17, 72), force=(1, 72 + cfg.sm_end))
        elif half == 0:
            mf = vw(k) + x[:10]
            ds += rd_p(h - 1); alu += pcheck(h - 1, 9); kw = dict(force=(0, 39))
            if h >= 2: dma += dma_p(h)
        else:
            mf = x[10:] + vw(k)
            alu += cvts(len(x[10:]))
            if k == 1: kw = dict(force=(1, cfg.sm_end))
            if k == 11: dma += dma_p(6)
        ds += rd_b(k + 1)
        dma += takeb(cfg.bq[k], k)
        left, rest = interleave(P, mf, ds, fix(dma), [alu, SM], **kw)
        SM = [(0, a[1]) for a in rest]
        if k >= 1: assert not rest, (k, rest)
        if half == 0: assert not left, left
        tags = [f"B{k+2}"]
        if half == 1 and h >= 2: tags.append(f"P{h}")
        if k == 11: tags += ["P6"]
        for tg in tags: assert not any(it[1][1] == tg for it in bseq), (k, tg)
        P.wait(tags, lgkm=0); e("s_barrier")
        if half == 1 or k == 0 or cfg.fine: stamp()

    def st_piece(i, pc): return f"buffer_store_dwordx4 {q4('v', 20*i+4*pc)}, v{vL16}, {sWs}, {s_rs[i]} offen offset:{1024*pc}{cfg.sc_st}"
    PK = [(0, 1), (2, 3), (4, 5), (6,), (7, 8), (9, 10), (11, 12), (13,), (14, 15), (16, 17), (18, 19), ()]
    def pack(i, j):
        b = 20 * i
        if len(PK[j]) == 2: return [f"v_cvt_pk_bf16_f32 v{b+j}, v{b+PK[j][0]}, v{b+PK[j][1]}"]
        if len(PK[j]) == 1: return [f"v_cvt_pk_bf16_f32 v{b+j}, v{b+PK[j][0]}, v{b+PK[j][0]}", f"v_bfi_b32 v{b+j}, {s_cst}, v{vN}, v{b+j}"]
        return [f"v_mov_b32 v{b+j}, v{vN}"]
    AFTER = {0: (0, 1), 1: (2, 3), 2: (4, 5), 3: (6, 7, 8), 4: (9, 10, 11)}
    spare = [80 + 4*n for n in range(12)] + [192 + 4*n for n in range(16)]
    def W2(k, nt, ks): return Wf(k & 1, nt, ks) if k < 14 else spare[(k - 14) * 10 + nt * 2 + ks]
    def V2(k, bi, kt, ks):
        if k < 14: return Vf(k & 1, bi, kt, ks)
        return spare[20 + (k - 14) * 4 + kt * 2 + ks] if bi else Vf(k & 1, 1, kt, ks)
    def lds(k):
        base = bslot(k); win = 1 if base >= WIN else 0
        return win, base - win * WIN
    def rdV(k, bi):
        win, off = lds(k)
        return [f"ds_read_b128 {q4('a', V2(k, bi, kt, ks))}, v{vRV(win, ks)} offset:{off + bi*4096 + kt*2048}" for kt in range(2) for ks in range(2)]
    def rdW(k):
        win, off = lds(k)
        return [f"ds_read_b64_tr_b16 {q2('a', W2(k, nt, ks)+2*j)}, v{vRW(win, nt&1)} offset:{off + ks*10240 + j*1280 + 32*nt}"
                for nt in range(5) for ks in range(2) for j in range(2)]
    def tile(k, bi, nt, kt):
        dd = q4('v', VWacc(bi, nt, kt))
        return [mfma(dd, q4('a', V2(k, bi, kt, ks)), q4('a', W2(k, nt, ks)), "0" if (k & 1 == 0 and ks == 0) else dd) for ks in range(2)]
    PH = {(5, 0): vP, (5, 1): vP + 8, (6, 1): 120, (7, 1): vP + 8, (6, 0): 120, (7, 0): vP + 8}
    def rdP(h, bi): return [f"ds_read_b128 {q4('v', PH[h, bi] + 4*n)}, v{vRP} offset:{8192*(h&1) + 1024*(2*bi + n)}" for n in range(2)]
    def chkP(h, bi):
        b = PH[h, bi]; r = []
        for k in range(8):
            r.append(f"v_xor_b32 v{b+k}, v{vM+(k&3)}, v{b+k}")
            if k == 1: r.append(f"v_or_b32 v{vChk}, v{b}, v{b+1}")
            elif k & 1: r.append(f"v_or3_b32 v{vChk}, v{vChk}, v{b+k-1}, v{b+k}")
        r += [f"v_and_b32 v{vChk}, 0xc000c000, v{vChk}", f"v_cmp_ne_u32 vcc, 0, v{vChk}"]
        L = f"{h}_{bi}"
        slow.extend([f"L_pslow{L}:", f"s_mov_b32 {s_cnt}, 0", f"s_lshl_b32 s3, {s_hh}, 11", f"s_sub_u32 s3, {s_pg}, s3", f"s_add_u32 s3, s3, {sH(h)}", f"L_ploop{L}:"] +
                    [f"buffer_load_dwordx4 {q4('v', b+4*n)}, v{vL16}, {sWs}, s3 offen offset:{1024*(2*bi+n)}{cfg.sc_ld}" for n in range(2)] +
                    ["s_waitcnt vmcnt(0)"] + r + ["s_nop 4", f"s_cbranch_vccz L_pback{L}", "s_sleep 4", f"s_add_u32 {s_cnt}, {s_cnt}, 1",
                     f"s_cmp_lt_u32 {s_cnt}, {cfg.spin_cap}", f"s_cbranch_scc1 L_ploop{L}", f"s_branch L_pback{L}"])
        return r + [f"s_cbranch_vccnz L_pslow{L}\nL_pback{L}:"]
    def xpair(h, bi, nt):
        return [mfma(q4('v', Oacc(i, nt)), q4('v', VWf(bi, nt)), q4('v', PH[h, bi] + 4*(i & 1)), q4('v', Oacc(i, nt))) for i in (2*bi + 1, 2*bi)]
    mf, ev, pend, xat = [], [], [], {}
    xmin = {(6, 1): 62, (7, 1): 0, (6, 0): 0, (7, 0): 0}
    war = {}
    def flush(force=False):
        while pend and (force or (len(mf) - pend[0][0] >= cfg.XD and len(mf) >= xmin[pend[0][1:3]])):
            _, h, bi, nt, cv = pend.pop(0)
            for c_ in cv: c_[1] = len(mf) if c_[1] is None else min(c_[1], len(mf))
            xat.setdefault((h, bi), []).append(len(mf))
            mf.extend(xpair(h, bi, nt))
            if h == 7:
                for i in ((3, 2) if bi else (1,)):
                    for j in AFTER[nt]:
                        ev.extend([len(mf) + 2, None, y] for y in pack(i, j))
                        if j & 3 == 3: ev.append([len(mf) + 2, None, st_piece(i, j >> 2)])
    def group(h, bi, nt, ks_list, done):
        cv = []
        for kt in range(2):
            for k in ks_list:
                if k & 1 == 0:
                    for c_ in war.pop((bi, nt, kt), []): c_[1] = len(mf) if c_[1] is None else min(c_[1], len(mf))
                mf.extend(tile(k, bi, nt, kt))
                if done and k == ks_list[-1]:
                    assert len(xat[h - 1, bi]) > (nt if h > 6 else 0)
                    a_ = VWacc(bi, nt, kt); f_ = VWf(bi, nt) + 2*kt
                    cv += [[len(mf) + 3, None, f"v_cvt_pk_bf16_f32 v{f_}, v{a_}, v{a_+1}"], [len(mf) + 3, None, f"v_cvt_pk_bf16_f32 v{f_+1}, v{a_+2}, v{a_+3}"]]
                    war[bi, nt, kt] = cv[-2:]
                flush()
        if done: ev.extend(cv); pend.append((len(mf), h, bi, nt, cv))
    start = {}
    for (k, bi) in ((12, 1), (13, 1), (14, 1), (15, 1), (12, 0), (13, 0)):
        if k == 13:
            xat[5, bi] = [len(mf)]
            for nt in range(5): mf.extend(xpair(5, bi, nt)); flush()
        start[k, bi] = len(mf)
        for nt in range(5): group(k >> 1, bi, nt, [k], k & 1)
    start[14, 0] = len(mf)
    for nt in range(5): group(7, 0, nt, [14, 15], True)
    nmain = len(mf)
    flush(True)
    R = lambda i, k: 168 + 12 * (i - 1) + k
    so_r = {1: s_rr, 2: "s4", 3: "s5"}
    def recv(i): return [f"buffer_load_dwordx4 {q4('v', R(i,4*pc))}, v{vL16}, {sWs}, {so_r[i]} offen offset:{1024*pc}{cfg.sc_ld}" for pc in range(3)]
    probe = f"buffer_load_dword v{vT}, v{vL8}, {sWs}, {s_rr} offen{cfg.sc_ld}"
    ptest = [f"v_xor_b32 v{vT}, v{vN}, v{vT}", f"v_cmp_lt_u32 vcc, 0xffff, v{vT}"]
    testA = "s_lshr_b64 s[100:101], vcc, 16"; testB = "s_and_b32 s100, vcc_lo, 0xffff"
    def early(PP):
        PP.e(f"{testA}\ns_cbranch_scc1 L_noearly")
        for x in recv(3) + recv(2): PP.e(x, count=False)
        PP.e(f"s_mov_b32 {s_oa}, 1\n{testB}\ns_cbranch_scc1 L_noearly")
        for x in recv(1): PP.e(x, count=False)
        PP.e(f"s_mov_b32 {s_oa}, 2\nL_noearly:")
    n = len(mf)
    def dmaitems(lst): return [(lambda PP, it=it: ([PP.e(x) for x in it[2]], PP.e(it[0], it[1]))) for it in fix(lst)]
    rest_b = dmaitems(takeb(99, 99)); p7 = dmaitems(dma_p(7))
    m1 = rdP(5, 1) + rdP(5, 0) + rdP(6, 1) + rdV(13, 1) + rdW(13)
    for j, it in enumerate(rest_b): m1.insert(6 + 3*j, it)
    mem = [(0, x) for x in m1[:cfg.E1]] + [(cfg.E1, x) for x in p7 + m1[cfg.E1:] + rdV(14, 1) + rdW(14)]
    mem += [(max(cfg.E2, xat[5, 1][0] + 12), x) for x in rdP(7, 1)] + [(cfg.E2, x) for x in rdV(15, 1) + rdW(15)]
    late = xat[7, 1][-1] + 6
    mem += [(late, x) for x in rdV(13, 0) + rdP(6, 0) + rdP(7, 0) + rdV(14, 0) + rdV(15, 0)]
    mem += [(n - cfg.probe_back, (probe, "PR"))]
    def place(lst, g, dl): return [[g, dl, y] for y in lst]
    ev += place(chkP(5, 1), 5, xat[5, 1][0]) + place(chkP(6, 1), 20, xat[6, 1][0]) + place([a[1] for a in left], 0, start[12, 0])
    ev += place(chkP(7, 1), cfg.E2 + 8, xat[7, 1][0]) + place(chkP(5, 0), start[15, 1] - 1, xat[5, 0][0])
    ev += place([f"s_add_u32 s4, {s_rr}, 12288", f"s_add_u32 s5, {s_rr}, 24576", f"s_mov_b32 {s_cst}, 0xffff0000", f"s_mov_b32 {s_oa}, 0"], 56, 80)
    ev += place(chkP(6, 0), xat[5, 0][0], xat[6, 0][0]) + place(chkP(7, 0), xat[5, 0][0] + 8, xat[7, 0][0])
    ev += place([lambda PP: PP.wait(["PR"])] + ptest + [early], n - cfg.recv_back, None)
    ev.sort(key=lambda z: z[0])
    def bar(tags, lg=None): return [lambda PP: (PP.wait(tags, lgkm=lg), PP.e("s_barrier"))]
    fixed = {cfg.E1: bar(["B14"], 5), cfg.E2: bar(["B15", "P7"])}
    assert cfg.E1 - len(rest_b) >= 4 + 5 or not rest_b
    if cfg.fine:
        for g in (50, 110, 160): fixed.setdefault(g, []).append(lambda PP: stamp())
    mem, ev = stream(P, mf, mem, ev, fixed)
    assert not mem, mem
    for a in ev: e(a[2])
    stamp()
    if cfg.stamps: e(f"s_mov_b32 s6, 0")
    def spin_probe(name, test):
        e(f"s_mov_b32 {s_cnt}, 0\nL_pw{name}:")
        e(probe, count=False)
        e("s_waitcnt vmcnt(0)\n" + "\n".join(ptest) + f"\ns_nop 4\n{test}\ns_cbranch_scc0 L_pg{name}")
        if cfg.psleep: e(f"s_sleep {cfg.psleep}")
        e(f"s_add_u32 {s_cnt}, {s_cnt}, 1\ns_cmp_lt_u32 {s_cnt}, {cfg.spin_cap}\ns_cbranch_scc1 L_pw{name}\nL_pg{name}:")
    where = {v: (j, hf) for j, pr in enumerate(PK) for hf, v in enumerate(pr)}
    def absorb(i):
        e(f"v_xor_b32 v{vChk}, v{vN}, v{R(i,3)}\nv_xor_b32 v{vT}, v{vN}, v{R(i,7)}\nv_xor_b32 v{vT+1}, v{vN}, v{R(i,11)}")
        e(f"v_or3_b32 v{vChk}, v{vChk}, v{vT}, v{vT+1}\nv_cmp_lt_u32 vcc, 0xffff, v{vChk}\ns_nop 4")
        e(f"s_cbranch_vccnz L_rslow{i}\nL_rback{i}:")
        sl = [f"L_rslow{i}:", f"s_mov_b32 {s_cnt}, 0"]
        for pc in range(3):
            nxt = f"L_rp{i}_{pc+1}" if pc < 2 else f"L_rback{i}"
            sl += [f"L_rp{i}_{pc}:", f"v_xor_b32 v{vChk}, v{vN}, v{R(i,4*pc+3)}", f"v_cmp_lt_u32 vcc, 0xffff, v{vChk}", "s_nop 4", f"s_cbranch_vccz {nxt}"]
            sl += recv(i)[pc:] + ["s_waitcnt vmcnt(0)"] + (["s_add_u32 s6, s6, 1"] if cfg.stamps else [])
            sl += [f"s_add_u32 {s_cnt}, {s_cnt}, 1", f"s_cmp_lt_u32 {s_cnt}, {cfg.spin_cap}", f"s_cbranch_scc1 L_rp{i}_{pc}", f"s_branch L_rback{i}"]
        slow.extend(sl)
        if i == 1 or cfg.fine: stamp()
        for k in range(10):
            for n_, v in enumerate((2*k, 2*k + 1)):
                j, hf = where[v]
                e(f"v_and_b32 v{vT+n_}, {s_cst}, v{R(i,j)}" if hf else f"v_lshlrev_b32 v{vT+n_}, 16, v{R(i,j)}")
            e(f"v_add_f32 v{2*k}, v{2*k}, v{vT}\nv_add_f32 v{2*k+1}, v{2*k+1}, v{vT+1}")
            if i == 1:
                e(f"v_cvt_pk_bf16_f32 v{k}, v{2*k}, v{2*k+1}")
                if k & 1: e(f"buffer_store_dwordx2 {q2('v', k-1)}, v{vOutA}, {sOut}, {s_out} offen offset:{16*(k-1)}{cfg.out_aux}")
    nst = P.vmN(["PR"])
    e(f"s_cmp_eq_u32 {s_oa}, 2\ns_cbranch_scc1 L_allin")
    e(f"s_cmp_eq_u32 {s_oa}, 1\ns_cbranch_scc1 L_gotA")
    spin_probe("A", testA)
    for x in recv(3) + recv(2): e(x, count=False)
    e(f"{testB}\ns_cbranch_scc0 L_getB\nL_gotA:")
    e(probe, count=False)
    e("s_waitcnt vmcnt(0)\n" + "\n".join(ptest) + f"\ns_nop 4\n{testB}\ns_cbranch_scc1 L_sumA\nL_getB:")
    for x in recv(1): e(x, count=False)
    e(f"s_mov_b32 {s_oa}, 2\nL_allin:\ns_waitcnt vmcnt(3)\nL_sumA:")
    absorb(3); absorb(2)
    e(f"s_cmp_eq_u32 {s_oa}, 2\ns_cbranch_scc1 L_sumB")
    spin_probe("B", testB)
    for x in recv(1): e(x, count=False)
    e("L_sumB:\ns_waitcnt vmcnt(0)")
    absorb(1)
    if cfg.stamps: e(f"v_writelane_b32 v{vTS}, s6, 63")
    if cfg.stamps:
        e("s_waitcnt vmcnt(0)")
        stamp(True)
        e(f"s_lshl_b32 s3, s2, 2\ns_add_u32 s3, s3, {s_w}\ns_lshl_b32 s3, s3, 8\ns_add_u32 s3, s3, {cfg.tsbase}")
        e(f"v_lshrrev_b32 v{vT}, 2, v{vL16}")
        e(f"buffer_store_dword v{vTS}, v{vT}, {sWs}, s3 offen")
    if cfg.probe is not None:
        e("s_waitcnt vmcnt(0)")
        stamp()
        if cfg.probe_wg is not None: e(f"s_cmp_lg_u32 s2, {cfg.probe_wg}\ns_cbranch_scc1 L_end")
        e(f"L_hold:\ns_sleep 4\ns_memrealtime s[100:101]\ns_waitcnt lgkmcnt(0)\ns_sub_u32 s100, s100, {s_t0}\ns_cmp_lt_u32 s100, 6000\ns_cbranch_scc1 L_hold")
    e("L_end:\ns_endpgm")
    for x in slow: e(x, count=False)
    e("L_last:\ns_endpgm")
    P.finalize()
    hdr = open(f"cdna_kernels/{NAME}.s.ref").read().split("; Override launch")[0]
    out = hdr + "; @launch grid=(256,1,1) block=(256,1,1) lds=163840\n"
    out += f'.amdgcn_target "amdgcn-amd-amdhsa--gfx950"\n.text\n.globl {NAME}_kernel\n.p2align 8\n.type {NAME}_kernel,@function\n'
    out += P.text()
    out += "; per (batch group, c): order of the ten 64-deep k chunks, order of the eight heads\n.p2align 4\nL_table:\n"
    ords = chunk_orders(cfg.order)
    for gb in range(8):
        for c in range(4):
            o = ords[(c - gb) & 3]; ho = head_order(cfg.horder, gb, c)
            assert sorted(o) == list(range(10)) and sorted(ho) == list(range(8))
            out += f".long {sum(o[k] << (4*k) for k in range(8)):#x}, {o[8] | (o[9] << 4):#x}, {sum(ho[k] << (4*k) for k in range(8)):#x}, 0\n"
    out += f""".section .rodata,"a"
.p2align 6
.amdhsa_kernel {NAME}_kernel
  .amdhsa_next_free_vgpr 512
  .amdhsa_next_free_sgpr 102
  .amdhsa_accum_offset 256
  .amdhsa_group_segment_fixed_size 0
  .amdhsa_kernarg_size 104
  .amdhsa_user_sgpr_count 2
  .amdhsa_user_sgpr_kernarg_segment_ptr 1
  .amdhsa_system_sgpr_workgroup_id_x 1
  .amdhsa_float_denorm_mode_32 3
  .amdhsa_float_denorm_mode_16_64 3
.end_amdhsa_kernel
"""
    return out, P

if __name__ == "__main__":
    cfg = Cfg()
    dst = f"cdna_kernels/{NAME}.s"
    for a in sys.argv[1:]:
        k, v = a.split("=", 1)
        if k == "o": dst = v
        elif k == "nt":
            for n in v.split(","):
                if n: setattr(cfg, "nt_" + n, " nt")
        else:
            cur = getattr(cfg, k)
            setattr(cfg, k, eval(v) if not isinstance(cur, str) else (v if k in ("order", "horder") else v.replace("_", " ")))
    txt, P = build(cfg)
    open(dst, "w").write(txt)
    print(dst, "instructions:", len(P.ins), "pads:", P.pads)
```
